```python
import torch

def _softmax(x, axis=-1):
    return torch.softmax(x, dim=axis)
def _gelu(x):
    return torch.nn.functional.gelu(x, approximate="tanh")
def _silu(x):
    return torch.nn.functional.silu(x)
def _sigmoid(x):
    return torch.sigmoid(x)
def _layernorm(x, axis=-1, eps=1e-5):
    m = x.mean(dim=axis, keepdim=True)
    v = x.var(dim=axis, keepdim=True, unbiased=False)
    return (x - m) / torch.sqrt(v + eps)
def _scatter_add(tgt, idx, src, axis=0):
    return tgt.clone().index_add_(axis, idx, src)
def _segment_sum(src, seg, n):
    out = torch.zeros((n,) + src.shape[1:], dtype=src.dtype)
    return out.index_add_(0, seg, src)
def _pad(x, pw):
    flat = tuple(v for pair in reversed(pw) for v in pair)
    return torch.nn.functional.pad(x, flat)

kernel_name = 'gated_mix__ssm_conv_h3__compressed_kv_cla__prompt'

def setup_inputs():

    _w = (lambda a: (lambda t: t.to(torch.bfloat16) if t.is_floating_point() else t)(torch.as_tensor(a)))
    def _A_setup():
        B, S, D = 1, 2048, 512
        ks = 4
        return {
            "q": _w((lambda *s: torch.randn(*s, dtype=torch.bfloat16) * 0.05)(B, S, D)),
            "k": _w((lambda *s: torch.randn(*s, dtype=torch.bfloat16) * 0.4)(B, S, D)),
            "v": _w((lambda *s: torch.randn(*s, dtype=torch.bfloat16) * 0.4)(B, S, D)),
            "shift_k": _w((lambda *s: torch.randn(*s, dtype=torch.bfloat16) * 0.4)(D, ks) * 0.5),
            "ssm_k": _w((lambda *s: torch.randn(*s, dtype=torch.bfloat16) * 0.8)(D, S) * (1.0 / S ** 0.5)),
            "ssm_D": _w((lambda *s: torch.randn(*s, dtype=torch.bfloat16) * 0.4)(D)),
        }
    _A_in = _A_setup()

    def _B_setup():
        B, H, Sq, Sk, D, M = 1, 32, 2048, 2048, 128, 512
        Dc = 4 * D
        return {
            "x": _w((lambda *s: torch.randn(*s, dtype=torch.bfloat16) * 0.05)(B, Sq, M)),
            "c_kv": _w((lambda *s: torch.randn(*s, dtype=torch.bfloat16) * 0.4)(B, Sk, Dc)),
            "w_q": _w((lambda *s: torch.randn(*s, dtype=torch.bfloat16) * 6.4)(M, H, D) * (M ** -0.5)),
            "w_uk": _w((lambda *s: torch.randn(*s, dtype=torch.bfloat16) * 6.4)(Dc, H, D) * (Dc ** -0.5)),
            "w_uv": _w((lambda *s: torch.randn(*s, dtype=torch.bfloat16) * 0.4)(Dc, H, D) * (Dc ** -0.5)),
            "w_o": _w((lambda *s: torch.randn(*s, dtype=torch.bfloat16) * 0.4)(H, D, M) * ((H * D) ** -0.5)),
        }
    _B_in = _B_setup()

    return {
        "A_q": _A_in["q"],
        "A_k": _A_in["k"],
        "A_v": _A_in["v"],
        "A_shift_k": _A_in["shift_k"],
        "A_ssm_k": _A_in["ssm_k"],
        "A_ssm_D": _A_in["ssm_D"],
        "B_x": _B_in["x"],
        "B_c_kv": _B_in["c_kv"],
        "B_w_q": _B_in["w_q"],
        "B_w_uk": _B_in["w_uk"],
        "B_w_uv": _B_in["w_uv"],
        "B_w_o": _B_in["w_o"],
        "gate_w": _w((lambda *s: torch.randn(*s, dtype=torch.bfloat16) * 0.05)(512) * 16.0),
    }

def reference(A_q, A_k, A_v, A_shift_k, A_ssm_k, A_ssm_D, B_x, B_c_kv, B_w_q, B_w_uk, B_w_uv, B_w_o, gate_w):
    def _A_ref(q, k, v, shift_k, ssm_k, ssm_D):
        B, S, D = q.shape
        ks = shift_k.shape[-1]
        k_pad = _pad(k, ((0, 0), (ks - 1, 0), (0, 0)))
        k_shift = torch.zeros_like(k)
        for t in range(ks):
            k_shift = k_shift + k_pad[:, t:t + S, :] * shift_k[:, ks - 1 - t][None, None, :]
        kv = k_shift * v
        L = 2 * S
        kv_pad = _pad(kv, ((0, 0), (0, S), (0, 0)))
        kf_pad = _pad(ssm_k, ((0, 0), (0, S)))
        kv_f = (lambda x, axes=(-2,-1): torch.fft.rfft2(x.float(), dim=axes))(kv_pad[:, None, :, :], axes=(1, 2))
        kf_f = (lambda x, axes=(-2,-1): torch.fft.rfft2(x.float(), dim=axes))(kf_pad[:, None, :], axes=(1, 2))
        kf_f = (lambda x, *d: x.permute(*d))(kf_f, 1, 2, 0)
        y_f = kv_f * kf_f[None, :, :, :]
        y = (lambda x, s, axes=(-2,-1): torch.fft.irfft2(x, s=s, dim=axes).to(torch.bfloat16))(y_f, (1, L), axes=(1, 2))[:, 0, :S, :]
        y = y + kv * ssm_D[None, None, :]
        return q * y

    def _B_ref(x, c_kv, w_q, w_uk, w_uv, w_o):
        B, Sq, M = x.shape[0], x.shape[1], x.shape[2]
        Sk = c_kv.shape[1]
        H, D = w_q.shape[1], w_q.shape[2]
        q = torch.einsum("bqm,mhd->bhqd", x, w_q)
        k = torch.einsum("bkc,chd->bhkd", c_kv, w_uk)
        v = torch.einsum("bkc,chd->bhkd", c_kv, w_uv)
        scores = torch.einsum("bhqd,bhkd->bhqk", q, k) * (D ** -0.5)
        off = Sk - Sq
        qi = torch.arange(Sq)[:, None]
        kj = torch.arange(Sk)[None, :]
        cmask = kj <= (qi + off)
        scores = torch.where(cmask[None, None], scores, -1e9)
        p = _softmax(scores, axis=-1)
        ctx = torch.einsum("bhqk,bhkd->bhqd", p, v)
        return torch.einsum("bhqd,hdm->bqm", ctx, w_o)

    x = A_q
    g = _sigmoid((x * gate_w).sum(-1, keepdims=True))
    a = _A_ref(x, A_k, A_v, A_shift_k, A_ssm_k, A_ssm_D)
    b = _B_ref(x, B_c_kv, B_w_q, B_w_uk, B_w_uv, B_w_o)
    return g * a + (1 - g) * b
```

```python
import re

def v(i, n=1): return f"v{i}" if n == 1 else f"v[{i}:{i+n-1}]"
def a(i, n=1): return f"a{i}" if n == 1 else f"a[{i}:{i+n-1}]"
def s(i, n=1): return f"s{i}" if n == 1 else f"s[{i}:{i+n-1}]"

class R:
    def __init__(self, f, i): self.f, self.i = f, i
    def __call__(self, off=0, n=1):
        return (v if self.f == 'v' else a)(self.i + off, n)

_reg = re.compile(r'^(-|abs\()?([vas])(?:(\d+)|\[(\d+):(\d+)\])\)?$')
def regs(tok):
    tok = tok.strip()
    if tok in ('vcc',): return {('s', 'vcc')}
    if tok == 'm0': return {('s', 'm0')}
    if tok == 'exec': return {('s', 'exec')}
    m = _reg.match(tok)
    if not m: return set()
    f = m.group(2)
    if m.group(3) is not None: return {(f, int(m.group(3)))}
    return {(f, i) for i in range(int(m.group(4)), int(m.group(5)) + 1)}

TRANS = ('v_exp_f32', 'v_log_f32', 'v_rcp_f32', 'v_rsq_f32', 'v_sqrt_f32')

class Ins:
    def __init__(self, text):
        self.text = text
        t = text.split(';')[0].strip()
        self.label = t.endswith(':') or t.startswith('.') or t == ''
        self.w = set(); self.r = set(); self.kind = None; self.states = 1
        self.srcC = set(); self.ab = set(); self.dpp = False; self.stdata = set(); self.wide = False
        if self.label: self.states = 0; return
        parts = t.split(None, 1)
        mn = parts[0]; self.mn = mn
        ops = []
        if len(parts) > 1:
            ops = [o.strip() for o in parts[1].split(',')]
            ops2 = []
            for o in ops:
                ops2.append(o.split()[0] if o else o)
            mods = parts[1]
            ops = ops2
        else: mods = ''
        R_ = [regs(o) for o in ops]
        if mn == 's_nop': self.states = int(ops[0], 0) + 1; self.kind = 'salu'; return
        if mn.startswith('v_mfma'):
            self.kind = 'mfma'; self.w = R_[0]; self.ab = R_[1] | R_[2]; self.srcC = R_[3]
            self.r = self.ab | self.srcC
            self.passes = 4 if '16x16x32' in mn else 8
        elif mn.startswith('v_'):
            self.kind = 'valu'
            self.dpp = '_dpp' in mn or 'row_' in mods or 'quad_perm' in mods
            if 'permlane' in mn:
                self.w = R_[0] | R_[1]; self.r = R_[0] | R_[1]
            else:
                self.w = set(R_[0]); self.r = set().union(*R_[1:]) if len(R_) > 1 else set()
                if mn.startswith('v_fmac') or mn.startswith('v_dot2c') or self.dpp: self.r |= R_[0]
                if '_co_' in mn: self.w |= R_[1]
        elif mn.startswith('ds_read'):
            self.kind = 'ds'; self.w = R_[0]; self.r = R_[1]
        elif mn.startswith('ds_write'):
            self.kind = 'ds'; self.r = set().union(*R_)
        elif mn.startswith('buffer_load'):
            self.kind = 'vmem'
            if re.search(r'\blds\b', mods):
                self.r = set().union(*R_) | {('s', 'm0')}; self.dma = True
            else:
                self.w = R_[0]; self.r = set().union(*R_[1:])
        elif mn.startswith('buffer_store'):
            self.kind = 'vmem'; self.r = set().union(*R_); self.stdata = R_[0]
            self.wide = 'x4' in mn or 'x3' in mn
        elif mn.startswith('s_'):
            self.kind = 'salu'
            if mn.startswith('s_cmp') or mn.startswith('s_cbranch') or mn in ('s_waitcnt', 's_barrier', 's_branch', 's_endpgm', 's_setprio', 's_sleep'):
                self.r = set().union(*R_) if R_ else set()
                if 'vcc' in mn: self.r |= {('s', 'vcc')}
            else:
                self.w = R_[0]; self.r = set().union(*R_[1:]) if len(R_) > 1 else set()
                if 'saveexec' in mn: self.w |= {('s', 'exec')}
        else:
            raise ValueError("unknown instr " + text)

def need(p, c):
    n = 0
    vec = lambda S: {x for x in S if x[0] in 'va'}
    sc = lambda S: {x for x in S if x[0] == 's'}
    if p.kind == 'valu':
        if c.kind == 'mfma' and vec(p.w) & c.r: n = max(n, 2)
        if c.kind == 'valu':
            if p.mn in TRANS and c.mn not in TRANS and vec(p.w) & c.r: n = max(n, 1)
            if (c.dpp or 'permlane' in c.mn) and vec(p.w) & c.r: n = max(n, 2)
            if c.mn.startswith('v_readfirstlane') or c.mn.startswith('v_readlane'):
                if vec(p.w) & c.r: n = max(n, 1)
            if sc(p.w) & c.r: n = max(n, 2)
        if c.kind == 'vmem' and sc(p.w) & c.r: n = max(n, 5)
        if c.kind == 'mfma' and ('s', 'exec') in p.w: n = max(n, 4)
    if p.kind == 'salu':
        if ('s', 'm0') in p.w and c.kind == 'vmem' and ('s', 'm0') in c.r: n = max(n, 1)
    if p.kind == 'mfma':
        big = {4: 8, 8: 12}[p.passes]
        if c.kind == 'mfma':
            if p.w & c.ab: n = max(n, big)
            if p.w & c.srcC and not (p.w == c.srcC and p.passes == c.passes): n = max(n, {4: 6, 8: 10}[p.passes])
            if p.w & c.w and not (p.w == c.srcC) : n = max(n, 0)
        elif c.kind in ('valu', 'vmem', 'ds'):
            if p.w & (c.r | c.w): n = max(n, big)
            if c.kind == 'valu' and p.srcC & c.w: n = max(n, {4: 3, 8: 7}[p.passes])
    if p.kind == 'vmem' and p.wide and p.stdata & c.w:
        n = max(n, 2 if c.kind in ('valu', 'mfma') else 1)
    return n

def check(lines, name=""):
    ins = [Ins(l) for l in lines]
    ins = [i for i in ins if not i.label]
    bad = 0
    for ci, c in enumerate(ins):
        d = 0
        for pi in range(ci - 1, max(ci - 14, -1), -1):
            p = ins[pi]
            n = need(p, c)
            if n > d:
                print(f"HAZARD[{name}] need {n} have {d}:\n   {p.text.strip()}\n   {c.text.strip()}")
                bad += 1
            d += p.states
            if d >= 13: break
    return bad

class Asm:
    def __init__(self):
        self.L = []
        self.vm = 0
        self.vm_done = 0
        self.lg = 0
        self.lg_done = 0
    def __call__(self, t):
        for l in t.strip('\n').split('\n'):
            l = l.strip()
            if not l: continue
            self.L.append(l if l.endswith(':') or l.startswith('.') else "    " + l)
    def vmem(self, t):
        self(t); self.vm += 1; return self.vm - 1
    def ds(self, t):
        self(t); self.lg += 1; return self.lg - 1
    def wait(self, vm=None, lg=None):
        parts = []
        if vm is not None and vm >= self.vm_done:
            n = self.vm - 1 - vm
            n = min(n, 63)
            parts.append(f"vmcnt({n})"); self.vm_done = self.vm - n
        if lg is not None and lg >= self.lg_done:
            n = self.lg - 1 - lg
            n = min(n, 15)
            parts.append(f"lgkmcnt({n})"); self.lg_done = self.lg - n
        if parts: self("s_waitcnt " + " ".join(parts))
    def text(self): return "\n".join(self.L) + "\n"

def srd(A, d, base, size):
    A(f"s_mov_b32 s{d}, s{base}")
    A(f"s_mov_b32 s{d+1}, s{base+1}")
    A(f"s_mov_b32 s{d+2}, {size}")
    A(f"s_mov_b32 s{d+3}, 0x00020000")

def kernel_wrap(name, body, nv, acc, ns=102):
    return f""".text
.globl {name}
.p2align 8
.type {name},@function
{name}:
{body}
.section .rodata,"a"
.p2align 6
.amdhsa_kernel {name}
  .amdhsa_next_free_vgpr {nv}
  .amdhsa_next_free_sgpr {ns}
  .amdhsa_accum_offset {acc}
  .amdhsa_group_segment_fixed_size 0
  .amdhsa_kernarg_size 128
  .amdhsa_user_sgpr_count 2
  .amdhsa_user_sgpr_kernarg_segment_ptr 1
  .amdhsa_system_sgpr_workgroup_id_x 1
.end_amdhsa_kernel
"""
```

```python
from asmlib import *
MB = 1 << 20
Q_OFF, K_OFF, V_OFF, CTX_OFF, U_OFF, Z_OFF, G_OFF = 0, 16*MB, 32*MB, 48*MB, 64*MB, 66*MB, 68*MB
WS_USED = 68*MB + 8192
P_X, P_K, P_V, P_SHIFT, P_SSMK, P_SSMD, P_BX, P_C, P_WQ, P_WUK, P_WUV, P_WO, P_GATE, P_OUT, P_DBG, P_WS = [16+2*i for i in range(16)]
MF = "v_mfma_f32_16x16x32_bf16"
import struct
def f2u(x): return struct.unpack('<I', struct.pack('<f', x))[0]
def hexf(x): return "0x%08x" % f2u(x)

def prologue(A, end_label):
    A(f"s_cmp_ge_u32 s2, 256")
    A(f"s_cbranch_scc1 {end_label}")
    A("s_load_dwordx16 s[16:31], s[0:1], 0")
    A("s_load_dwordx16 s[32:47], s[0:1], 64")
    A("v_lshrrev_b32 v1, 6, v0")
    A("v_and_b32 v0, 63, v0")
    A("v_readfirstlane_b32 s3, v1")
    A("v_lshlrev_b32 v1, 4, v0")
```

```python
from common import *
import math
QSCALE = math.log2(math.e) / math.sqrt(128.0)
NSLOT = 5
ST_FLAGS = ""

def gen_k1(opts={}):
    stf = opts.get('k1_store', ST_FLAGS)
    A = Asm()
    prologue(A, "K1_END")
    SA, SX, SB, SWQ, SWS, SK, SV, SM = 48, 52, 56, 60, 64, 68, 72, 76
    SG = 80
    vA, vB, vR = 2, 6, 10
    A("""
    v_lshrrev_b32 v30, 2, v0
    v_lshlrev_b32 v30, 10, v30
    v_lshrrev_b32 v31, 4, v0
    v_sub_u32 v32, 0, v31
    v_xor_b32 v32, v32, v0
    v_and_b32 v32, 3, v32
    v_lshl_add_u32 v2, v32, 4, v30
    v_add_u32 v3, 15360, v2
    v_add_u32 v4, 30720, v2
    v_add_u32 v5, 46080, v2
    """)
    A("""
    v_lshrrev_b32 v30, 3, v0
    v_lshlrev_b32 v30, 13, v30
    v_and_b32 v33, 1, v0
    v_lshl_add_u32 v30, v33, 4, v30
    v_bfe_u32 v33, v0, 1, 2
    v_and_b32 v34, 1, v31
    v_xor_b32 v33, v33, v34
    v_lshl_add_u32 v6, v33, 5, v30
    v_xor_b32 v33, 2, v33
    v_lshl_add_u32 v7, v33, 5, v30
    v_add_u32 v7, 64512, v7
    v_add_u32 v8, 129024, v6
    v_add_u32 v9, 129024, v7
    """)
    A("""
    s_lshr_b32 s4, s3, 1
    s_and_b32 s5, s3, 1
    v_bfe_u32 v30, v0, 2, 2
    v_sub_u32 v32, 0, v30
    v_xor_b32 v32, v32, v31
    v_and_b32 v32, 3, v32
    v_and_b32 v33, 15, v0
    v_lshl_add_u32 v32, v33, 2, v32
    v_lshlrev_b32 v32, 4, v32
    s_lshl_b32 s6, s4, 13
    v_add_u32 v10, s6, v32
    """)
    A("""
    v_lshl_add_u32 v32, v31, 3, v30
    v_lshlrev_b32 v32, 7, v32
    v_and_b32 v33, 3, v0
    v_lshl_add_u32 v32, v33, 3, v32
    s_lshl_b32 s6, s5, 12
    s_add_u32 s6, s6, 16384
    v_add_u32 v32, s6, v32
    v_bfe_u32 v33, v0, 3, 2
    """)
    for ct in range(4):
        A(f"v_xor_b32 v34, {ct}, v33")
        A(f"v_lshl_add_u32 v{11+ct}, v34, 5, v32")
    for q in (1, 2):
        for i in range(5):
            A(f"v_add_u32 v{10+5*q+i}, {q*65536}, v{10+i}")
    A("""
    s_and_b32 s6, s2, 1
    s_lshl_b32 s6, s6, 2
    s_bfe_u32 s7, s2, 0x20003
    s_add_u32 s6, s6, s7
    s_bfe_u32 s7, s2, 0x20001
    s_lshl_b32 s7, s7, 3
    s_lshr_b32 s8, s2, 5
    s_add_u32 s7, s7, s8
    """)
    A("""
    s_lshl_b32 s8, s6, 18
    s_lshl_b32 s9, s3, 16
    s_add_u32 s8, s8, s9
    s_lshl_b32 s9, s7, 8
    s_lshl_b32 s10, s5, 7
    s_add_u32 s9, s9, s10
    s_lshl_b32 s10, s4, 17
    s_add_u32 s10, s10, s9
    s_lshl_b32 s11, s3, 12
    s_lshl_b32 s12, s5, 12
    s_lshl_b32 s13, s4, 11
    s_add_u32 s12, s12, s13
    """)
    A("""
    s_lshl_b32 s13, s7, 19
    s_lshl_b32 s14, s6, 16
    s_add_u32 s13, s13, s14
    s_lshl_b32 s14, s4, 15
    s_add_u32 s13, s13, s14
    s_lshl_b32 s14, s5, 12
    s_add_u32 s14, s14, s13
    s_lshl_b32 s15, s5, 11
    s_add_u32 s13, s13, s15
    s_waitcnt lgkmcnt(0)
    """)
    srd(A, SA, P_C, 2*MB)
    A(f"s_cmp_eq_u32 s4, 0")
    A(f"s_cselect_b32 s{SB}, s{P_WUK}, s{P_WUV}")
    A(f"s_cselect_b32 s{SB+1}, s{P_WUK+1}, s{P_WUV+1}")
    A(f"s_mov_b32 s{SB+2}, {4*MB}")
    A(f"s_mov_b32 s{SB+3}, 0x00020000")
    srd(A, SX, P_X, 2*MB)
    srd(A, SWQ, P_WQ, 4*MB)

    dma_last = {}
    def dma_ops(c):
        slot = c % NSLOT
        ph2 = c >= 16
        k = c % 16
        ops = []
        def setA():
            A(f"s_add_u32 m0, s11, {slot*32768}")
            A(f"s_add_u32 s84, s8, {k*64}")
        ops.append(setA)
        for j in range(4):
            def f(j=j):
                dma_last[c] = A.vmem(f"buffer_load_dwordx4 v{vA+j}, s[{SX if ph2 else SA}:{(SX if ph2 else SA)+3}], s84 offen offset:{j*1024} lds")
            ops.append(f)
        def setB():
            A(f"s_add_u32 m0, s{12 if ph2 else 11}, {slot*32768+16384}")
            A(f"s_add_u32 s85, s{10 if ph2 else 9}, {k*32*8192}")
        ops.append(setB)
        for j in range(2 if ph2 else 4):
            def f(j=j):
                dma_last[c] = A.vmem(f"buffer_load_dwordx4 v{vB+j}, s[{SWQ if ph2 else SB}:{(SWQ if ph2 else SB)+3}], s85 offen offset:{j*1024} lds")
            ops.append(f)
        return ops
    for c in (0, 1):
        for f in dma_ops(c): f()
    srd(A, SWS, P_WS, WS_USED)
    srd(A, SK, P_K, 2*MB)
    srd(A, SV, P_V, 2*MB)
    srd(A, SM, P_SHIFT, 4096)
    srd(A, SG, P_GATE, 1024)
    PB = 128
    kr, vr, wsh, gx, gw = PB, PB+11, PB+20, PB+24, PB+32
    pa = PB+40
    A(f"""
    s_lshr_b32 s86, s2, 3
    s_lshl_b32 s86, s86, 6
    s_lshl_b32 s87, s3, 4
    s_add_u32 s86, s86, s87
    v_lshrrev_b32 v30, 5, v0
    v_and_b32 v31, 31, v0
    v_lshlrev_b32 v32, 3, v30
    v_add_u32 v32, s86, v32
    s_and_b32 s87, s2, 7
    s_lshl_b32 s88, s87, 7
    v_lshlrev_b32 v33, 10, v32
    v_lshl_add_u32 v33, v31, 2, v33
    v_add_u32 v{pa+1}, s88, v33
    v_subrev_u32 v{pa}, 3072, v{pa+1}
    v_add_u32 v{pa+2}, 4096, v{pa+1}
    s_lshl_b32 s88, s87, 9
    v_lshlrev_b32 v33, 4, v31
    v_add_u32 v{pa+3}, s88, v33
    s_lshl_b32 s88, s87, 18
    s_add_u32 s88, s88, {U_OFF}
    v_lshlrev_b32 v33, 13, v31
    v_lshl_add_u32 v33, v32, 1, v33
    v_add_u32 v{pa+4}, s88, v33
    v_add_u32 v{pa+5}, 4096, v{pa+4}
    s_lshl_b32 s88, s2, 3
    s_lshl_b32 s89, s3, 1
    s_add_u32 s88, s88, s89
    v_add_u32 v32, s88, v30
    v_lshlrev_b32 v{pa+6}, 5, v31
    v_lshl_add_u32 v{pa+7}, v32, 10, v{pa+6}
    v_lshlrev_b32 v32, 2, v32
    v_add_u32 v32, {G_OFF}, v32
    v_cmp_eq_u32 vcc, 31, v31
    v_mov_b32 v33, -1
    s_nop 0
    v_cndmask_b32 v{pa+8}, v33, v32, vcc
    """)
    for r in range(11):
        b, o = (pa, r) if r < 3 else ((pa+1, r-3) if r < 7 else (pa+2, r-7))
        A.vmem(f"buffer_load_dword v{kr+r}, v{b}, s[{SK}:{SK+3}], 0 offen offset:{o*1024}")
    for r in range(8):
        b, o = (pa+1, r) if r < 4 else (pa+2, r-4)
        A.vmem(f"buffer_load_dword v{vr+r}, v{b}, s[{SV}:{SV+3}], 0 offen offset:{o*1024}")
    A.vmem(f"buffer_load_dwordx4 {v(wsh,4)}, v{pa+3}, s[{SM}:{SM+3}], 0 offen")
    A.vmem(f"buffer_load_dwordx4 {v(gx,4)}, v{pa+7}, s[{SX}:{SX+3}], 0 offen")
    A.vmem(f"buffer_load_dwordx4 {v(gx+4,4)}, v{pa+7}, s[{SX}:{SX+3}], 0 offen offset:16")
    A.vmem(f"buffer_load_dwordx4 {v(gw,4)}, v{pa+6}, s[{SG}:{SG+3}], 0 offen")
    prep_last = A.vmem(f"buffer_load_dwordx4 {v(gw+4,4)}, v{pa+6}, s[{SG}:{SG+3}], 0 offen offset:16")
    for c in (2, 3):
        for f in dma_ops(c): f()

    prep = []
    def P(t): prep.append(lambda t=t: A(t))
    prep.append(lambda: A.wait(vm=prep_last))
    kf, wf, vf, uo, pk = PB+50, PB+72, PB+80, PB+96, PB+112
    for r in range(11):
        P(f"v_lshlrev_b32 v{kf+r}, 16, v{kr+r}")
        P(f"v_and_b32 v{kf+11+r}, 0xffff0000, v{kr+r}")
    for i in range(4):
        P(f"v_lshlrev_b32 v{wf+2*i}, 16, v{wsh+i}")
        P(f"v_and_b32 v{wf+2*i+1}, 0xffff0000, v{wsh+i}")
    for r in range(8):
        P(f"v_lshlrev_b32 v{vf+r}, 16, v{vr+r}")
        P(f"v_and_b32 v{vf+8+r}, 0xffff0000, v{vr+r}")
    for ch in range(2):
        for t in range(4):
            for r in range(8):
                w = wf + 4*ch + (3-t)
                if t == 0: P(f"v_mul_f32 v{uo+8*ch+r}, v{kf+11*ch+r}, v{w}")
                else: P(f"v_fmac_f32 v{uo+8*ch+r}, v{kf+11*ch+r+t}, v{w}")
        for r in range(8):
            P(f"v_mul_f32 v{uo+8*ch+r}, v{uo+8*ch+r}, v{vf+8*ch+r}")
        for j in range(4):
            P(f"v_cvt_pk_bf16_f32 v{pk+4*ch+j}, v{uo+8*ch+7-2*j}, v{uo+8*ch+6-2*j}")
        prep.append(lambda ch=ch: A.vmem(f"buffer_store_dwordx4 {v(pk+4*ch,4)}, v{pa+4+ch}, s[{SWS}:{SWS+3}], 0 offen"))
    ga = kf
    P(f"v_mov_b32 v{ga}, 0")
    for i in range(8):
        P(f"v_dot2c_f32_bf16 v{ga}, v{gx+i}, v{gw+i}")
    P("s_nop 3")
    for sh in (1, 2, 4, 8):
        P(f"v_add_f32_dpp v{ga}, v{ga}, v{ga} row_shr:{sh} row_mask:0xf bank_mask:0xf bound_ctrl:0")
        P("s_nop 1")
    P(f"v_add_f32_dpp v{ga}, v{ga}, v{ga} row_bcast:15 row_mask:0xa bank_mask:0xf")
    P(f"v_cvt_pk_bf16_f32 v{ga}, v{ga}, v{ga}")
    P(f"v_lshlrev_b32 v{ga}, 16, v{ga}")
    P(f"v_mul_f32 v{ga}, {hexf(-math.log2(math.e))}, v{ga}")
    P(f"v_exp_f32 v{ga}, v{ga}")
    P("s_nop 0")
    P(f"v_add_f32 v{ga}, 1.0, v{ga}")
    P(f"v_rcp_f32 v{ga}, v{ga}")
    P("s_nop 0")
    P(f"v_cvt_pk_bf16_f32 v{ga}, v{ga}, v{ga}")
    P(f"v_lshlrev_b32 v{ga}, 16, v{ga}")
    prep.append(lambda: A.vmem(f"buffer_store_dword v{ga}, v{pa+8}, s[{SWS}:{SWS+3}], 0 offen"))

    AR, BF, ET = 48, 64, 96
    rdA, rdB = {}, {}
    def readA(c, rt):
        slot = c % NSLOT
        g = c*8 + rt
        rdA[(c, rt)] = A.ds(f"ds_read_b128 {v(AR+(g%4)*4,4)}, v{vR+5*(slot>>1)} offset:{(slot&1)*32768+rt*1024}")
    def breg(c, mat, ct):
        if c < 16: return BF + (c & 1)*32 + (mat*4+ct)*4
        return BF + (c & 1)*16 + ct*4
    def readB(c, mat, ct, sec):
        slot = c % NSLOT
        rdB[c] = A.ds(f"ds_read_b64_tr_b16 {v(breg(c,mat,ct)+2*sec,2)}, v{vR+5*(slot>>1)+1+ct} offset:{(slot&1)*32768+mat*8192+sec*512}")
    def breads(c):
        return [(lambda mat=mat, ct=ct, sec=sec: readB(c, mat, ct, sec)) for mat in range(2 if c < 16 else 1) for ct in range(4) for sec in range(2)]
    epi = []
    cnt = [0]
    def frag(src_lo, src_hi, soff_base, soff_add, imm, agpr=True, scale=None):
        t = ET + (cnt[0] % 2)*16; cnt[0] += 1
        ops = []
        if agpr:
            for j in range(4): ops.append(f"v_accvgpr_read_b32 v{t+j}, a{src_lo+j}")
            for j in range(4): ops.append(f"v_accvgpr_read_b32 v{t+4+j}, a{src_hi+j}")
        else:
            for j in range(4): ops.append(f"v_mul_f32 v{t+j}, s90, v{src_lo+j}")
            for j in range(4): ops.append(f"v_mul_f32 v{t+4+j}, s90, v{src_hi+j}")
        for j in range(4): ops.append(f"v_cvt_pk_bf16_f32 v{t+8+j}, v{t+2*j}, v{t+2*j+1}")
        ops.append(f"s_add_u32 s91, s{soff_base}, {soff_add}")
        out = [(lambda o=o: A(o)) for o in ops]
        out.append(lambda: A.vmem(f"buffer_store_dwordx4 {v(t+8,4)}, v1, s[{SWS}:{SWS+3}], s91 offen offset:{imm} {stf}".rstrip()))
        return out
    for rt in range(8):
        for p in range(2):
            epi += frag((rt*4+2*p)*4, (rt*4+2*p+1)*4, 13, K_OFF + rt*4096, p*1024)
    for pp in range(4):
        for ct in range(4):
            epi += frag(128+((2*pp)*4+ct)*4, 128+((2*pp+1)*4+ct)*4, 14, V_OFF + pp*8192, ct*1024)
    A(f"s_mov_b32 s90, {hexf(QSCALE)}")

    A.wait(vm=dma_last[0])
    A("s_barrier")
    for f in breads(0): f()
    for rt in range(3): readA(0, rt)
    NST = 32
    for c in range(NST):
        ph2 = c >= 16
        hi = []
        if c + 1 < NST:
            A.wait(vm=dma_last[c+1])
            A("s_barrier")
            bq = breads(c+1)
        else: bq = []
        dq = dma_ops(c+4) if c + 4 < NST else []
        lo = prep if (not ph2 and c >= 1) else (epi if ph2 else [])
        nm = 4 if ph2 else 8
        for rt in range(8):
            g = c*8 + rt
            areg = v(AR+(g%4)*4, 4)
            for i in range(nm):
                mat, ct = divmod(i, 4)
                if i == 0:
                    A.wait(lg=max(rdA[(c, rt)], rdB[c]))
                b = v(breg(c, mat, ct), 4)
                if ph2: acc = v(128+(rt*4+ct)*4, 4)
                else: acc = a(mat*128+(rt*4+ct)*4, 4)
                cin = "0" if c % 16 == 0 else acc
                if mat == 0: A(f"{MF} {acc}, {b}, {areg}, {cin}")
                else: A(f"{MF} {acc}, {areg}, {b}, {cin}")
                used = 0
                if i == 0:
                    g3 = g + 3
                    if g3 < NST*8: readA(g3//8, g3 % 8); used += 1
                elif (not ph2 and i in (2, 5)) or (ph2 and i == 2):
                    if bq: bq.pop(0)(); used += 1
                    if c == 15 or (ph2 and False): pass
                elif (not ph2 and i in (3, 6)) or (ph2 and i == 1):
                    if dq: dq.pop(0)(); used += 1
                nlo = 1
                if ph2 and c == 16 and rt == 0: nlo = 0
                if ph2 and c == 16 and rt == 1: nlo = 0
                for _ in range(nlo if used else nlo + (1 if ph2 and False else 0)):
                    if lo: lo.pop(0)()
        assert not bq and not dq, (c, len(bq), len(dq))
    assert not prep
    while epi: epi.pop(0)()
    A("s_nop 7")
    for rt in range(8):
        for p in range(2):
            for f in frag(128+(rt*4+2*p)*4, 128+(rt*4+2*p+1)*4, 13, Q_OFF + rt*4096, p*1024, agpr=False): f()
    A("K1_END:")
    A("s_endpgm")
    return A
if __name__ == "__main__":
    A = gen_k1()
    print("hazards:", check(A.L, "k1"), "instrs", len(A.L))
```

```python
from common import *
BIG = 2.0**60
THR = 2.0**14
vK, vV = 2, 3
XB, NM, L, TS = 4, 6, 8, 10
TMP = 14
SC = 88
S0, E0, P0, C0, O0 = 16, 48, 56, 72, 128
HR = 192
aQ, aK, aV = 0, 32, 64
SWS, SH = 48, 52
sK, sKend, sKnext, sM, sV, sT, sTn, sQ0, sC0, sBlk, sTHR = 56, 57, 58, 59, 60, 61, 62, 64, 68, 72, 73
def Sreg(par, T, n, j=0): return S0 + par*16 + (T*2+n)*4 + j
def Preg(par, n, d=0): return P0 + par*8 + n*4 + d
def Creg(T, n, j=0): return C0 + (T*2+n)*4 + j
def Oreg(dt, n, j=0): return O0 + (dt*2+n)*4 + j
def ns_of(mode): return {'both': (0, 1), 'n1': (1,), None: ()}[mode]
def elems(mode): return [(T, n, j) for T in range(2) for n in ns_of(mode) for j in range(4)]
UB = 131072
RED = 73728

def xlane(A, op, r, t):
    for sw in ("v_permlane16_swap_b32", "v_permlane32_swap_b32"):
        A(f"v_mov_b32 v{t}, v{r}")
        A("s_nop 1")
        A(f"{sw} v{r}, v{t}")
        A(f"{op} v{r}, v{r}, v{t}")

def gen_k2(opts={}):
    stf = opts.get('k2_store', '')
    A = Asm()
    slow = []
    prologue(A, "K2_END")
    A(f"""
    s_and_b32 s4, s2, 7
    s_lshl_b32 s4, s4, 2
    s_bfe_u32 s5, s2, 0x20003
    s_add_u32 s4, s4, s5
    s_lshr_b32 s5, s2, 5
    s_lshl_b32 s6, s4, 19
    s_lshl_b32 s{sM}, s3, 12
    s_add_u32 s{sK}, s6, s{sM}
    s_add_u32 s{sK}, s{sK}, {K_OFF}
    s_mov_b32 s{sKnext}, s{sK}
    s_sub_u32 s7, 16, s5
    s_lshl_b32 s{sTn}, s7, 1
    s_lshl_b32 s8, s7, 15
    s_add_u32 s{sKend}, s{sK}, s8
    s_add_u32 s8, s5, 1
    s_lshl_b32 s{sTn+1}, s8, 1
    s_lshl_b32 s8, s8, 15
    s_add_u32 s74, s{sK}, s8
    """)
    A(f"""
    s_sub_u32 s7, 15, s5
    s_lshl_b32 s7, s7, 3
    s_lshl_b32 s8, s5, 3
    s_sub_u32 s9, 7, s3
    s_add_u32 s10, s7, s3
    s_add_u32 s11, s7, s9
    s_add_u32 s12, s8, s3
    s_add_u32 s13, s8, s9
    s_lshl_b32 s14, s4, 12
    s_add_u32 s14, s14, {CTX_OFF}
    """)
    for k_, src in enumerate((10, 11, 12, 13)):
        A(f"s_lshl_b32 s15, s{src}, 12")
        A(f"s_add_u32 s{sQ0+k_}, s15, s6")
        A(f"s_lshl_b32 s15, s{src}, 17")
        A(f"s_add_u32 s{sC0+k_}, s15, s14")
    A(f"s_mov_b32 s{sTHR}, {hexf(THR)}")
    A(f"s_mov_b32 s{sBlk}, 0")
    A(f"""
    v_and_b32 v{SC}, 15, v0
    v_lshrrev_b32 v{SC+1}, 4, v0
    v_lshlrev_b32 v{SC+2}, 2, v{SC+1}
    v_sub_u32 v{SC+2}, v{SC}, v{SC+2}
    s_lshl_b32 s7, s3, 4
    s_lshl_b32 s8, s9, 4
    v_add_u32 v{XB}, s7, v{SC+2}
    v_add_u32 v{XB+1}, s8, v{SC+2}
    v_cvt_f32_i32 v{XB}, v{XB}
    v_cvt_f32_i32 v{XB+1}, v{XB+1}
    v_mul_f32 v{XB}, {hexf(BIG)}, v{XB}
    v_mul_f32 v{XB+1}, {hexf(BIG)}, v{XB+1}
    v_mov_b32 v{vK}, v1
    s_waitcnt lgkmcnt(0)
    """)
    srd(A, SWS, P_WS, WS_USED)
    def qloads():
        for n in range(2):
            for ks in range(4):
                A.vmem(f"buffer_load_dwordx4 {a(aQ+n*16+ks*4,4)}, v1, s[{SWS}:{SWS+3}], s{sQ0+n} offen offset:{ks*1024}")
    def dmaK():
        return [lambda j=j: A.vmem(f"buffer_load_dwordx4 v1, s[{SWS}:{SWS+3}], s{sK} offen offset:{j*1024} lds") for j in range(4)]
    def dma_iter():
        ops = []
        ops.append(lambda: A(f"s_add_u32 m0, s{sM}, 65536"))
        ops.append(lambda: A(f"s_add_u32 s{sV}, s{sK}, {V_OFF-K_OFF}"))
        ops += [lambda j=j: A.vmem(f"buffer_load_dwordx4 v1, s[{SWS}:{SWS+3}], s{sV} offen offset:{j*1024} lds") for j in range(4)]
        ops.append(lambda: A(f"s_add_u32 s{sK}, s{sK}, 16384"))
        ops.append(lambda: (A(f"s_cmp_ge_u32 s{sK}, s{sKend}"), A(f"s_cselect_b32 s{sK}, s{sKnext}, s{sK}")))
        ops.append(lambda: A(f"s_add_u32 s{sM}, s{sM}, 16384"))
        ops.append(lambda: A(f"s_and_b32 s{sM}, s{sM}, 0xffff"))
        ops.append(lambda: A(f"s_mov_b32 m0, s{sM}"))
        ops.append(lambda: None)
        ops += dmaK()
        return ops
    qloads()
    A(f"s_mov_b32 m0, s{sM}")
    A(f"s_mov_b32 s{sQ0}, s{sQ0+2}")
    A(f"s_mov_b32 s{sQ0+1}, s{sQ0+3}")
    for f in dmaK(): f()
    d0 = dma_iter()
    for f in d0[:11]: f()
    A("s_nop 0")
    for f in d0[11:]: f()
    srd(A, SH, P_SSMK, 2*MB)
    A(f"""
    s_lshl_b32 s7, s2, 13
    s_lshl_b32 s8, s3, 10
    s_add_u32 s7, s7, s8
    s_add_u32 s8, s7, 4096
    s_lshl_b32 s10, s2, 2
    s_load_dword s75, s[{P_SSMD}:{P_SSMD+1}], s10
    v_subrev_u32 v{SC}, 16, v1
    s_lshl_b32 s10, s3, 6
    v_add_u32 v{SC+1}, s10, v0
    v_cmp_eq_u32 vcc, 0, v{SC+1}
    v_add_u32 v{SC+2}, s7, v{SC}
    v_add_u32 v{SC+3}, s8, v{SC}
    v_mov_b32 v{SC+4}, 0x80000000
    v_cndmask_b32 v{SC+2}, v{SC+2}, v{SC+4}, vcc
    v_cndmask_b32 v{SC+3}, v{SC+3}, v{SC+4}, vcc
    """)
    A.vmem(f"buffer_load_dwordx4 {v(HR,4)}, v{SC+2}, s[{SH}:{SH+3}], 0 offen")
    A.vmem(f"buffer_load_dwordx4 {v(HR+4,4)}, v1, s[{SH}:{SH+3}], s7 offen")
    A.vmem(f"buffer_load_dwordx4 {v(HR+8,4)}, v{SC+3}, s[{SH}:{SH+3}], 0 offen")
    A.vmem(f"buffer_load_dwordx4 {v(HR+12,4)}, v1, s[{SH}:{SH+3}], s8 offen")
    A(f"""
    s_add_u32 s7, s7, {U_OFF}
    s_add_u32 s8, s8, {U_OFF}
    s_lshl_b32 s10, s3, 10
    s_add_u32 m0, s10, {UB+512}
    s_nop 0
    """)
    A.vmem(f"buffer_load_dwordx4 v1, s[{SWS}:{SWS+3}], s7 offen lds")
    A(f"s_add_u32 m0, s10, {UB+4608+512}")
    A("s_nop 0")
    A.vmem(f"buffer_load_dwordx4 v1, s[{SWS}:{SWS+3}], s8 offen lds")
    A(f"""
    v_mov_b32 v{SC}, 0
    v_mov_b32 v{SC+1}, 0
    v_lshrrev_b32 v{SC+2}, 1, v1
    v_add_u32 v{SC+2}, {UB}, v{SC+2}
    ds_write_b64 v{SC+2}, v[{SC}:{SC+1}]
    ds_write_b64 v{SC+2}, v[{SC}:{SC+1}] offset:4608
    """)
    for _ in range(2):
        d0 = dma_iter()
        for f in d0[:11]: f()
        A("s_nop 0")
        for f in d0[11:]: f()
    A("s_waitcnt lgkmcnt(0)")

    rd = {}
    def readK(x, half): rd[('K', x)] = A.ds(f"ds_read_b128 {a(aK+x*4,4)}, v{vK} offset:{half*8192+x*1024}")
    def readV(x, half): rd[('V', x)] = A.ds(f"ds_read_b128 {a(aV+x*4,4)}, v{vV} offset:{half*8192+x*1024}")
    def adv():
        return [f"v_add_u32 v{vV}, 0x10000, v{vK}", f"v_add_u32 v{vK}, 0x4000, v{vK}", f"v_and_b32 v{vK}, 0xffff, v{vK}"]
    def maskops(n, d):
        ops = []
        for T in range(2):
            for j in range(4):
                ops.append(f"v_add_f32 v{Creg(T,n,j)}, {hexf((0.5-32*d-16*T-j)*BIG)}, v{XB+n}")
        for T in range(2):
            for j in range(4):
                ops.append(f"v_min_f32 v{Creg(T,n,j)}, v{Creg(T,n,j)}, v{NM+n}")
        return ops
    lab = [0]
    def cond_mask(d):
        lab[0] += 1
        A(f"s_cmp_lg_u32 s{sT}, 2")
        A(f"s_cbranch_scc1 K2_NM{lab[0]}")
        for o in maskops(0, d): A(o)
        A("s_nop 1")
        A(f"K2_NM{lab[0]}:")
    def sm_stream(par, mode, nxt_mode, lpend):
        el = elems(mode); ne = len(el)
        nx = elems(nxt_mode)[:2]
        slots = []
        seen = set()
        pend = [f"v_add_f32 v{L+n}, v{L+n}, v{TS+2*(par^1)+n}" for n in lpend]
        for x in range(ne):
            ex, post = [], []
            e = x + 2
            if e < ne:
                T, n, j = el[e]; ex.append(f"v_exp_f32 v{E0+e%8}, v{Sreg(par,T,n,j)}")
            elif e - ne < len(nx):
                T, n, j = nx[e-ne]; ex.append(f"v_exp_f32 v{E0+(e-ne)%8}, v{Sreg(par^1,T,n,j)}")
            e = x + 1
            if e < ne:
                T, n, j = el[e]; ts = TS+2*par+n
                if n not in seen:
                    if j == 1: post.append(f"v_add_f32 v{ts}, v{E0+(e-1)%8}, v{E0+e%8}"); seen.add(n)
                    elif pend: post.append(pend.pop(0))
                else: post.append(f"v_add_f32 v{ts}, v{ts}, v{E0+e%8}")
                if j % 2 == 1: post.append(f"v_cvt_pk_bf16_f32 v{Preg(par,n,2*T+j//2)}, v{E0+(e-1)%8}, v{E0+e%8}")
                elif pend and x >= 1: post.append(pend.pop(0))
            else:
                if mode == 'both':
                    post.append(f"v_max_f32 v{TMP}, v{TS+2*par}, v{TS+2*par+1}")
                    post.append(f"v_cmp_lt_f32 vcc, s{sTHR}, v{TMP}")
                else:
                    post.append(f"v_cmp_lt_f32 vcc, s{sTHR}, v{TS+2*par+1}")
            slots.append((ex, post))
        assert not pend
        return slots
    def slow_path(par, mode, nxt_mode):
        lab[0] += 1
        n_ = lab[0]
        A(f"s_cbranch_vccnz K2_SLOW{n_}")
        A(f"K2_BACK{n_}:")
        B = Asm()
        B(f"K2_SLOW{n_}:")
        B("s_nop 7"); B("s_nop 3")
        for n in ns_of(mode):
            m = SC + n
            r = [Sreg(par, T, n, j) for T in range(2) for j in range(4)]
            B(f"v_max3_f32 v{m}, v{r[0]}, v{r[1]}, v{r[2]}")
            B(f"v_max3_f32 v{m}, v{m}, v{r[3]}, v{r[4]}")
            B(f"v_max3_f32 v{m}, v{m}, v{r[5]}, v{r[6]}")
            B(f"v_max3_f32 v{m}, v{m}, v{r[7]}, 0")
            xlane(B, "v_max_f32", m, SC+2)
            f = SC + 3
            B(f"v_exp_f32 v{f}, -v{m}")
            B(f"v_sub_f32 v{NM+n}, v{NM+n}, v{m}")
            B(f"v_mul_f32 v{L+n}, v{L+n}, v{f}")
            for dt in range(8):
                for j in range(4): B(f"v_mul_f32 v{Oreg(dt,n,j)}, v{Oreg(dt,n,j)}, v{f}")
            for T in range(2):
                for j in range(4):
                    B(f"v_sub_f32 v{Sreg(par,T,n,j)}, v{Sreg(par,T,n,j)}, v{m}")
                    B(f"v_sub_f32 v{Sreg(par^1,T,n,j)}, v{Sreg(par^1,T,n,j)}, v{m}")
                    B(f"v_sub_f32 v{Creg(T,n,j)}, v{Creg(T,n,j)}, v{m}")
            for i_, rr in enumerate(r): B(f"v_exp_f32 v{E0+i_}, v{rr}")
            B("s_nop 0")
            ts = TS+2*par+n
            B(f"v_add_f32 v{ts}, v{E0}, v{E0+1}")
            for i_ in range(2, 8): B(f"v_add_f32 v{ts}, v{ts}, v{E0+i_}")
            for d in range(4): B(f"v_cvt_pk_bf16_f32 v{Preg(par,n,d)}, v{E0+2*d}, v{E0+2*d+1}")
        for e, (T, n, j) in enumerate(elems(nxt_mode)[:2]):
            B(f"v_exp_f32 v{E0+e}, v{Sreg(par^1,T,n,j)}")
        B("s_nop 1")
        B(f"s_branch K2_BACK{n_}")
        slow.append(B)

    def period(par, qk, sm, pv, nxt, lpend, kread, vread, advance, dq=None, extra=None, after_pre=None):
        units = []
        if qk:
            for x in range(8):
                T, ks = divmod(x, 4)
                ms = []
                for n in ns_of(qk):
                    d = v(Sreg(par^1, T, n), 4)
                    ms.append(f"{MF} {d}, {a(aK+x*4,4)}, {a(aQ+n*16+ks*4,4)}, {v(Creg(T,n),4) if ks == 0 else d}")
                units.append((ms, ('K', x)))
        if pv:
            for x in range(8):
                ms = []
                for n in ns_of(pv):
                    d = v(Oreg(x, n), 4)
                    ms.append(f"{MF} {d}, {a(aV+x*4,4)}, {v(Preg(par^1,n),4)}, {d}")
                units.append((ms, ('V', x)))
        nu = len(units)
        reads = [[] for _ in range(nu)]
        pre_reads = []
        if vread is not None:
            if qk:
                for x in range(8): reads[x].append(lambda x=x: readV(x, vread))
            else:
                pre_reads = [lambda x=x: readV(x, vread) for x in range(8)]
        kpos = 8 if (qk and pv) else 0
        if kread is not None:
            for x in range(8): reads[kpos+x].append(lambda x=x: readK(x, kread))
        slots = sm_stream(par, sm, nxt, lpend) if sm else []
        if not sm:
            slots = [([], [f"v_add_f32 v{L+n}, v{L+n}, v{TS+2*(par^1)+n}" for n in lpend])]
        per = [[] for _ in range(nu)]
        for i_, sl in enumerate(slots): per[min(nu-1, i_*nu//max(len(slots), nu) if len(slots) > nu else i_*(nu//len(slots)))].append(sl)
        dq = dq or []; extra = extra or []
        for f in pre_reads: f()
        if after_pre: after_pre()
        late_k = (kpos == 0)
        for x, (ms, key) in enumerate(units):
            if x % 4 == 0:
                A.wait(lg=max(rd[units[y][1]] for y in range(x, x+4)))
            if advance and x == kpos and not late_k:
                pass
            ex = [o for sl in per[x] for o in sl[0]]
            post = [o for sl in per[x] for o in sl[1]]
            if len(per[x]) > 1:
                ex = []; post = [o for sl in per[x] for o in (sl[0] + sl[1])]
            A(ms[0])
            if advance and x == kpos and late_k:
                for o in adv(): A(o)
            if len(ms) == 2:
                for o in ex: A(o)
                A(ms[1])
                for f in reads[x]: f()
            else:
                for f in reads[x]: f()
                for o in ex: A(o)
            if dq: dq.pop(0)()
            for o in post: A(o)
            if advance and x == kpos - 1:
                for o in adv(): A(o)
            ne = (len(extra) + (nu-x) - 1)//(nu-x)
            for _ in range(ne): extra.pop(0)()
        assert not dq
        if sm: slow_path(par, sm, nxt)

    def epilogue_ops(n):
        ops = []
        B = Asm()
        xlane(B, "v_add_f32", L+n, SC+4)
        B(f"v_rcp_f32 v{SC+5}, v{L+n}")
        B("s_nop 0")
        ops += [(lambda o=o: A(o)) for o in B.L]
        for ks in range(4):
            for hi in range(2):
                for j in range(4):
                    r = Oreg(2*ks+hi, n, j)
                    ops.append(lambda r=r: A(f"v_mul_f32 v{r}, v{r}, v{SC+5}"))
            t = 96 + (n*4+ks)*4
            for d in range(4):
                r = Oreg(2*ks + d//2, n, (d % 2)*2)
                ops.append(lambda r=r, d=d, t=t: A(f"v_cvt_pk_bf16_f32 v{t+d}, v{r}, v{r+1}"))
            ops.append(lambda t=t, ks=ks: A.vmem(f"buffer_store_dwordx4 {v(t,4)}, v1, s[{SWS}:{SWS+3}], s{sC0+n} offen offset:{ks*1024} {stf}".rstrip()))
        return ops

    A("K2_BLK:")
    A(f"s_mov_b32 s{sT}, s{sTn}")
    A("s_waitcnt vmcnt(16)")
    A("s_barrier")
    for x in range(8): readK(x, 0)
    for n in range(2):
        A(f"v_mov_b32 v{NM+n}, 0"); A(f"v_mov_b32 v{L+n}, 0")
    for i_ in range(16): A(f"v_mov_b32 v{C0+i_}, 0")
    cond_mask(0)
    zero = [(lambda i_=i_: A(f"v_mov_b32 v{O0+i_}, 0")) for i_ in range(64)]
    z1, z2 = zero[:40], zero[40:]
    period(1, 'both', None, None, None, (), 1, None, False, extra=z1)
    for f in z2[:10]: f()
    for n in range(2):
        m = SC + n
        r = [Sreg(0, T, n, j) for T in range(2) for j in range(4)]
        A(f"v_max3_f32 v{m}, v{r[0]}, v{r[1]}, v{r[2]}")
        A(f"v_max3_f32 v{m}, v{m}, v{r[3]}, v{r[4]}")
        A(f"v_max3_f32 v{m}, v{m}, v{r[5]}, v{r[6]}")
        A(f"v_max_f32 v{m}, v{m}, v{r[7]}")
    for sw in ("v_permlane16_swap_b32", "v_permlane32_swap_b32"):
        A(f"v_mov_b32 v{SC+2}, v{SC}"); A(f"v_mov_b32 v{SC+3}, v{SC+1}")
        z2.pop()()
        A(f"{sw} v{SC}, v{SC+2}"); A(f"{sw} v{SC+1}, v{SC+3}")
        A(f"v_max_f32 v{SC}, v{SC}, v{SC+2}"); A(f"v_max_f32 v{SC+1}, v{SC+1}, v{SC+3}")
    for n in range(2): A(f"v_sub_f32 v{NM+n}, 0, v{SC+n}")
    for T in range(2):
        for n in range(2):
            for j in range(4): A(f"v_mov_b32 v{Creg(T,n,j)}, v{NM+n}")
    cond_mask(1)
    subs = [(lambda T=T, n=n, j=j: A(f"v_add_f32 v{Sreg(0,T,n,j)}, v{Sreg(0,T,n,j)}, v{NM+n}")) for (T, n, j) in elems('both')]
    for f in subs: f()
    for e in range(2):
        T, n, j = elems('both')[e]; A(f"v_exp_f32 v{E0+e}, v{Sreg(0,T,n,j)}")
    period(0, 'both', 'both', None, 'both', (), 0, None, True, extra=z2[10:])
    A(f"s_sub_u32 s{sT}, s{sT}, 1")
    A(f"s_cmp_eq_u32 s{sT}, 1")
    A("s_cbranch_scc1 K2_LAST")
    A(".p2align 6")
    A("K2_LOOP:")
    l0 = len(A.L)
    A.lg_done = A.lg - 8
    A("s_waitcnt vmcnt(8)")
    A("s_barrier")
    cond_mask(0)
    dq = dma_iter()
    period(1, 'both', 'both', 'both', 'both', (0, 1), 1, 0, False, dq=dq)
    cond_mask(1)
    period(0, 'both', 'both', 'both', 'both', (0, 1), 0, 1, True)
    A(f"s_sub_u32 s{sT}, s{sT}, 1")
    A(f"s_cmp_lg_u32 s{sT}, 1")
    A("s_cbranch_scc1 K2_LOOP")
    loop_body = A.L[l0:]
    A("K2_LAST:")
    A.lg_done = A.lg - 8
    A("s_waitcnt vmcnt(8)")
    A("s_barrier")
    for o in maskops(1, 2): A(o)
    A("s_nop 1")
    period(1, 'n1', 'both', 'both', 'n1', (0, 1), 1, 0, False, dq=dma_iter())
    for o in maskops(1, 3): A(o)
    A("s_nop 1")
    period(0, 'n1', 'n1', 'both', 'n1', (0, 1), None, 1, True)
    A("s_waitcnt vmcnt(8)")
    A("s_barrier")
    def drain_loads():
        A(f"s_cmp_lg_u32 s{sBlk}, 0")
        A("s_cbranch_scc1 K2_NOQ")
        qloads()
        A("K2_NOQ:")
        d0 = dma_iter()
        for f in d0[:11]: f()
        A("s_nop 0")
        for f in d0[11:]: f()
    e0 = epilogue_ops(0)
    h = len(e0)//2
    period(1, None, 'n1', 'n1', None, (1,), None, 0, False, extra=e0[:h], after_pre=drain_loads)
    period(0, None, None, 'n1', None, (1,), None, 1, False, extra=e0[h:])
    A("s_nop 7")
    for f in epilogue_ops(1): f()
    A(f"""
    s_mov_b32 s{sTn}, s{sTn+1}
    s_mov_b32 s{sC0}, s{sC0+2}
    s_mov_b32 s{sC0+1}, s{sC0+3}
    s_mov_b32 s{sKend}, s74
    s_mov_b32 s{sKnext}, 0x40000000
    s_add_u32 s{sBlk}, s{sBlk}, 1
    s_cmp_eq_u32 s{sBlk}, 1
    s_cbranch_scc1 K2_BLK
    """)
    A("s_waitcnt vmcnt(8)")
    A("s_barrier")
    Z = 16
    A(f"s_lshl_b32 s7, s3, 10")
    A(f"v_add_u32 v2, s7, v1")
    for ch in range(2):
        W = HR + 8*ch
        zb = Z + 24*ch
        for i_ in range(7): A(f"v_alignbit_b32 v{zb+i_}, v{W+i_+1}, v{W+i_}, 16")
        for i_ in range(1, 7): A(f"v_alignbit_b32 v{zb+8+i_-1}, v{W+i_+1}, v{W+i_}, 16")
        for i_ in range(1, 7): A(f"v_mov_b32 v{zb+16+i_-1}, v{W+i_}")
        src = {0: zb, 2: zb+8, 4: zb+2, 6: zb+8+2, 1: zb+16, 3: W+2, 5: zb+16+2, 7: W+4}
        for ci in range(8):
            A.ds(f"ds_write_b128 v2, {v(src[ci],4)} offset:{ch*33280+ci*4160+16}")
    A(f"""
    v_and_b32 v3, 15, v0
    v_mul_u32_u24 v3, 4160, v3
    v_mov_b32 v64, 0
    v_mov_b32 v65, 0
    v_mov_b32 v66, 0
    v_mov_b32 v67, 0
    """)
    A.ds("ds_write_b128 v3, v[64:67]")
    A(f"""
    s_lshr_b32 s7, s3, 1
    s_and_b32 s8, s3, 1
    v_and_b32 v4, 7, v0
    v_mul_u32_u24 v4, 4160, v4
    v_bfe_u32 v5, v0, 3, 1
    v_lshrrev_b32 v6, 4, v0
    v_add_u32 v5, v5, v6
    v_lshl_add_u32 v4, v5, 4, v4
    s_mul_i32 s9, s7, 33280
    s_lshl_b32 s10, s8, 8
    s_add_u32 s9, s9, s10
    v_add_u32 v4, s9, v4
    v_and_b32 v7, 15, v0
    v_lshlrev_b32 v5, 1, v7
    v_sub_u32 v5, v5, v6
    v_lshlrev_b32 v5, 4, v5
    s_mul_i32 s9, s7, 4608
    s_add_u32 s9, s9, {UB+512+16-192}
    s_sub_u32 s11, s9, s10
    v_add_u32 v5, s11, v5
    s_waitcnt lgkmcnt(0)
    s_barrier
    """)
    A.lg_done = A.lg
    aF, aG = 96, 160
    ACC = 128
    rdc = {}
    def creads(rho):
        b = rho & 1
        out = []
        for i_ in range(8):
            out.append(lambda i_=i_: rdc.__setitem__(('F', rho, i_), A.ds(f"ds_read_b128 {a(aF+32*b+4*i_,4)}, v4 offset:{i_*512+rho*64}")))
            out.append(lambda i_=i_: rdc.__setitem__(('G', rho, i_), A.ds(f"ds_read_b128 {a(aG+32*b+4*i_,4)}, v5 offset:{i_*512+(3-rho)*64}")))
        return out
    for f in creads(0): f()
    first = set()
    for rho in range(4):
        b = rho & 1
        nx = creads(rho+1) if rho < 3 else []
        pairs = sorted([(t, s_) for t in range(8) for s_ in range(8) if t+s_ < 8], key=lambda p: (max(p), p))
        for i_, (t, s_) in enumerate(pairs):
            A.wait(lg=max(rdc[('F', rho, t)], rdc[('G', rho, s_)]))
            nt = t + s_
            d = v(ACC+4*nt, 4)
            A(f"{MF} {d}, {a(aF+32*b+4*t,4)}, {a(aG+32*b+4*s_,4)}, {d if nt in first else 0}")
            first.add(nt)
            if nx and i_ % 2 == 1 and i_ >= 3: nx.pop(0)()
        assert not nx
    A(f"""
    v_lshrrev_b32 v8, 1, v6
    v_lshl_add_u32 v8, v7, 1, v8
    v_lshlrev_b32 v8, 4, v8
    v_and_b32 v9, 1, v6
    v_xor_b32 v9, 1, v9
    v_lshl_add_u32 v8, v9, 3, v8
    s_mul_i32 s9, s7, 4608
    s_lshl_b32 s10, s8, 11
    s_add_u32 s9, s9, s10
    s_add_u32 s9, s9, {UB+512}
    v_add_u32 v8, s9, v8
    s_lshl_b32 s9, s3, 12
    s_add_u32 s9, s9, {RED}
    v_add_u32 v10, s9, v1
    s_xor_b32 s9, s9, 4096
    v_add_u32 v11, s9, v1
    """)
    assert RED % 8192 == 0
    for i_ in range(4): A.ds(f"ds_read_b64 {v(16+2*i_,2)}, v8 offset:{i_*512}")
    A("s_cmp_eq_u32 s8, 0")
    A("s_cbranch_scc0 K2_CV1")
    for i_ in range(4): A(f"ds_write_b128 v10, {v(ACC+16+4*i_,4)} offset:{i_*1024}")
    A("s_branch K2_CV2")
    A("K2_CV1:")
    for i_ in range(4): A(f"ds_write_b128 v10, {v(ACC+4*i_,4)} offset:{i_*1024}")
    A("s_nop 1")
    for i_ in range(16): A(f"v_mov_b32 v{ACC+i_}, v{ACC+16+i_}")
    A("K2_CV2:")
    A("s_waitcnt lgkmcnt(0)")
    A("s_barrier")
    for i_ in range(4): A(f"ds_read_b128 {v(32+4*i_,4)}, v11 offset:{i_*1024}")
    A(f"""
    s_lshl_b32 s9, s75, 16
    s_and_b32 s10, s75, 0xffff0000
    s_cmp_eq_u32 s7, 0
    s_cselect_b32 s9, s9, s10
    s_lshl_b32 s10, s2, 13
    s_lshl_b32 s11, s7, 12
    s_add_u32 s10, s10, s11
    s_lshl_b32 s11, s8, 11
    s_add_u32 s10, s10, s11
    s_add_u32 s10, s10, {Z_OFF}
    v_lshlrev_b32 v12, 5, v7
    v_lshl_add_u32 v12, v6, 3, v12
    """)
    for i_ in range(4):
        A(f"v_and_b32 v48, 0xffff0000, v{16+2*i_+1}")
        A(f"v_lshlrev_b32 v49, 16, v{16+2*i_+1}")
        A(f"v_and_b32 v50, 0xffff0000, v{16+2*i_}")
        A(f"v_lshlrev_b32 v51, 16, v{16+2*i_}")
        for j in range(4): A(f"v_fmac_f32 v{ACC+4*i_+j}, s9, v{48+j}")
    A("s_waitcnt lgkmcnt(0)")
    for i_ in range(4):
        for j in range(4): A(f"v_add_f32 v{ACC+4*i_+j}, v{ACC+4*i_+j}, v{32+4*i_+j}")
        A(f"v_cvt_pk_bf16_f32 v{52+2*i_}, v{ACC+4*i_}, v{ACC+4*i_+1}")
        A(f"v_cvt_pk_bf16_f32 v{52+2*i_+1}, v{ACC+4*i_+2}, v{ACC+4*i_+3}")
        A(f"buffer_store_dwordx2 {v(52+2*i_,2)}, v12, s[{SWS}:{SWS+3}], s10 offen offset:{i_*512}")
    A("K2_END:")
    A("s_endpgm")
    for B in slow: A.L += B.L
    return A, [loop_body + loop_body]
if __name__ == "__main__":
    A, ex = gen_k2()
    print("hazards:", check(A.L, "k2") + sum(check(e, "k2x") for e in ex), "instrs", len(A.L))
```

```python
from common import *
def gen_k3(opts={}):
    A = Asm()
    prologue(A, "K3_END")
    SWS, SWO, SX, SO = 48, 52, 56, 60
    NB = opts.get('k3_depth', 7)
    RING = 8
    A("""
    s_and_b32 s4, s2, 7
    s_lshl_b32 s4, s4, 2
    s_bfe_u32 s5, s2, 0x20003
    s_add_u32 s4, s4, s5
    s_lshr_b32 s5, s2, 5
    """)
    A("""
    v_lshrrev_b32 v30, 3, v0
    v_lshlrev_b32 v30, 10, v30
    v_and_b32 v31, 1, v0
    v_lshl_add_u32 v30, v31, 4, v30
    v_bfe_u32 v31, v0, 1, 2
    v_lshrrev_b32 v32, 4, v0
    v_xor_b32 v31, v31, v32
    v_lshl_add_u32 v2, v31, 5, v30
    v_add_u32 v3, 7168, v2
    v_add_u32 v4, 14336, v2
    v_add_u32 v5, 21504, v2
    """)
    A("""
    v_lshrrev_b32 v30, 2, v0
    v_lshlrev_b32 v30, 7, v30
    v_and_b32 v31, 3, v0
    v_lshl_add_u32 v30, v31, 3, v30
    s_lshl_b32 s6, s3, 15
    v_add_u32 v30, s6, v30
    v_bfe_u32 v31, v0, 3, 2
    """)
    for ct in range(4):
        A(f"v_xor_b32 v33, {ct}, v31")
        A(f"v_lshl_add_u32 v{6+ct}, v33, 5, v30")
    for rt in range(4): A(f"v_add_u32 v{10+rt}, {rt*131072}, v1")
    A(f"""
    s_lshl_b32 s7, s4, 19
    s_add_u32 s7, s7, s6
    s_add_u32 s7, s7, {CTX_OFF}
    s_lshl_b32 s8, s3, 20
    s_lshl_b32 s9, s5, 7
    s_add_u32 s8, s8, s9
    s_waitcnt lgkmcnt(0)
    """)
    srd(A, SWS, P_WS, WS_USED)
    srd(A, SWO, P_WO, 4*MB)
    last = {}
    def loads(k):
        sl = k % RING
        ops = []
        ops.append(lambda: (A(f"s_add_u32 m0, s6, {sl*4096}"), A(f"s_add_u32 s10, s8, {k*32768}")))
        for j in range(4):
            ops.append(lambda j=j: A.vmem(f"buffer_load_dwordx4 v{2+j}, s[{SWO}:{SWO+3}], s10 offen offset:{j*1024} lds"))
        if k % 4 == 0: ops.append(lambda: A(f"s_add_u32 s11, s7, {k*1024}"))
        for rt in range(4):
            def f(rt=rt): last[k] = A.vmem(f"buffer_load_dwordx4 {a(sl*16+rt*4,4)}, v{10+rt}, s[{SWS}:{SWS+3}], s11 offen offset:{(k%4)*1024}")
            ops.append(f)
        return ops
    for k in range(2):
        for f in loads(k): f()
    srd(A, SX, P_X, 2*MB)
    srd(A, SO, P_OUT, 2*MB)
    ZL = 131072
    A(f"""
    v_lshrrev_b32 v30, 1, v0
    v_lshlrev_b32 v30, 12, v30
    v_and_b32 v31, 1, v0
    v_lshl_add_u32 v14, v31, 4, v30
    v_add_u32 v15, {32*4096-1024}, v14
    s_lshl_b32 s12, s5, 18
    s_lshl_b32 s13, s4, 7
    s_add_u32 s12, s12, s13
    s_lshl_b32 s13, s3, 5
    s_add_u32 s12, s12, s13
    s_add_u32 s12, s12, {Z_OFF}
    s_lshl_b32 s13, s3, 11
    s_add_u32 s13, s13, {ZL}
    s_mov_b32 m0, s13
    v_and_b32 v30, 15, v0
    s_lshl_b32 s14, s4, 6
    s_lshl_b32 s15, s3, 4
    s_add_u32 s14, s14, s15
    v_add_u32 v30, s14, v30
    v_lshlrev_b32 v16, 10, v30
    v_lshl_add_u32 v16, v32, 3, v16
    v_add_u32 v16, s9, v16
    v_lshlrev_b32 v17, 2, v30
    v_add_u32 v17, {G_OFF}, v17
    v_lshrrev_b32 v30, 2, v0
    v_lshlrev_b32 v30, 5, v30
    v_and_b32 v31, 3, v0
    v_lshl_add_u32 v30, v31, 3, v30
    v_add_u32 v18, s13, v30
    """)
    A.vmem(f"buffer_load_dwordx4 v14, s[{SWS}:{SWS+3}], s12 offen lds")
    A.vmem(f"buffer_load_dwordx4 v15, s[{SWS}:{SWS+3}], s12 offen offset:1024 lds")
    for ct in range(4):
        A.vmem(f"buffer_load_dwordx2 {v(20+2*ct,2)}, v16, s[{SX}:{SX+3}], 0 offen offset:{ct*32}")
    A.vmem(f"buffer_load_dword v19, v17, s[{SWS}:{SWS+3}], 0 offen")
    for k in range(2, NB):
        for f in loads(k): f()
    BF, ACC = 64, 128
    rdB = {}
    def breads(k):
        sl = k % RING
        return [(lambda ct=ct, sec=sec: rdB.__setitem__(k, A.ds(f"ds_read_b64_tr_b16 {v(BF+(k&1)*16+ct*4+2*sec,2)}, v{6+ct} offset:{sl*4096+sec*2048}"))) for ct in range(4) for sec in range(2)]
    A.wait(vm=last[0])
    for f in breads(0): f()
    NK = 32
    for k in range(NK):
        bq = []
        if k + 1 < NK:
            A.wait(vm=last[k+1], lg=rdB[k])
            bq = breads(k+1)
        else: A.wait(lg=rdB[k])
        lq = loads(k+NB) if k + NB < NK else []
        sl = k % RING
        for i in range(16):
            rt, ct = divmod(i, 4)
            d = v(ACC+(rt*4+ct)*4, 4)
            A(f"{MF} {d}, {v(BF+(k&1)*16+ct*4,4)}, {a(sl*16+rt*4,4)}, {d if k else 0}")
            if i % 2 == 0 and bq: bq.pop(0)()
            if lq and (i % 2 == 1 or len(lq) > (16-i)//2): lq.pop(0)()
        assert not bq and not lq
    for ct in range(4): A.ds(f"ds_read_b64_tr_b16 {v(40+2*ct,2)}, v18 offset:{ct*512}")
    A("s_barrier")
    A("s_lshl_b32 s10, s3, 12")
    A("v_add_u32 v30, s10, v1")
    A("s_lshl_b32 s10, s3, 14")
    A("v_add_u32 v31, s10, v1")
    A("s_nop 3")
    for rt in range(4):
        for ct in range(4):
            A.ds(f"ds_write_b128 v30, {v(ACC+(rt*4+ct)*4,4)} offset:{rt*16384+ct*1024}")
    A("s_waitcnt lgkmcnt(0)")
    A("s_barrier")
    ids = []
    for ct in range(4):
        for src in range(4):
            ids.append(A.ds(f"ds_read_b128 {v(ACC+(ct*4+src)*4,4)}, v31 offset:{src*4096+ct*1024}"))
    A("v_sub_f32 v28, 1.0, v19")
    for ct in range(4):
        for j in range(4):
            xr, zr = 20+2*ct+j//2, 40+2*ct+j//2
            if j % 2 == 0:
                A(f"v_lshlrev_b32 v48, 16, v{xr}"); A(f"v_lshlrev_b32 v49, 16, v{zr}")
            else:
                A(f"v_and_b32 v48, 0xffff0000, v{xr}"); A(f"v_and_b32 v49, 0xffff0000, v{zr}")
            A(f"v_mul_f32 v48, v48, v49")
            A(f"v_mul_f32 v{64+ct*4+j}, v48, v19")
    for ct in range(4):
        A.wait(lg=ids[ct*4+3])
        b = ACC + ct*16
        for j in range(4):
            A(f"v_add_f32 v{b+j}, v{b+j}, v{b+4+j}")
            A(f"v_add_f32 v{b+8+j}, v{b+8+j}, v{b+12+j}")
        for j in range(4):
            A(f"v_add_f32 v{b+j}, v{b+j}, v{b+8+j}")
        for j in range(4):
            A(f"v_fmac_f32 v{64+ct*4+j}, v{b+j}, v28")
        A(f"v_cvt_pk_bf16_f32 v{50+2*ct}, v{64+ct*4}, v{64+ct*4+1}")
        A(f"v_cvt_pk_bf16_f32 v{50+2*ct+1}, v{64+ct*4+2}, v{64+ct*4+3}")
        A(f"buffer_store_dwordx2 {v(50+2*ct,2)}, v16, s[{SO}:{SO+3}], 0 offen offset:{ct*32}")
    A("K3_END:")
    A("s_endpgm")
    return A, []
if __name__ == "__main__":
    A, ex = gen_k3()
    print("hazards:", check(A.L, "k3"), "instrs", len(A.L))
```

```python
import sys, json
from common import *
import importlib
NAME = "gated_mix__ssm_conv_h3__compressed_kv_cla__prompt"
HDR = open("cdna_kernels/%s.s.ref" % NAME).read().split("; Override launch geometry")[0]
def build(opts, which=(1,2,3)):
    ks = []
    bad = 0
    if 1 in which:
        import k1; A = k1.gen_k1(opts); bad += check(A.L, "k1"); ks.append(("gm_proj_kernel", A, 512, 256, 163840))
    if 2 in which:
        import k2; A, extra = k2.gen_k2(opts); bad += check(A.L, "k2") + sum(check(e, "k2x") for e in extra); ks.append(("gm_attn_kernel", A, 512, 256, 163840))
    if 3 in which:
        import k3; A, extra = k3.gen_k3(opts); bad += check(A.L, "k3") + sum(check(e, "k3x") for e in extra); ks.append(("gm_out_kernel", A, 512, 256, 163840))
    assert bad == 0, "hazards"
    s = HDR
    for n, A, nv, acc, lds in ks:
        s += f"; @launch kernel={n} grid=(256,1,1) block=(256,1,1) lds={lds}\n"
    s += '.amdgcn_target "amdgcn-amd-amdhsa--gfx950"\n'
    for n, A, nv, acc, lds in ks:
        s += kernel_wrap(n, A.text(), nv, acc)
    return s
if __name__ == "__main__":
    out = sys.argv[1]
    which = tuple(int(c) for c in sys.argv[2]) if len(sys.argv) > 2 else (1,2,3)
    opts = json.loads(sys.argv[3]) if len(sys.argv) > 3 else {}
    open(out, "w").write(build(opts, which))
    print("wrote", out)
```

```python
from asmlib import *
MB = 1 << 20
Q_OFF, K_OFF, V_OFF, CTX_OFF, U_OFF, Z_OFF, G_OFF = 0, 16*MB, 32*MB, 48*MB, 64*MB, 66*MB, 68*MB
WS_USED = 68*MB + 32768
P_X, P_K, P_V, P_SHIFT, P_SSMK, P_SSMD, P_BX, P_C, P_WQ, P_WUK, P_WUV, P_WO, P_GATE, P_OUT, P_DBG, P_WS = [16+2*i for i in range(16)]
MF = "v_mfma_f32_16x16x32_bf16"
import struct
def f2u(x): return struct.unpack('<I', struct.pack('<f', x))[0]
def hexf(x): return "0x%08x" % f2u(x)

def prologue(A, end_label):
    A(f"s_cmp_ge_u32 s2, 256")
    A(f"s_cbranch_scc1 {end_label}")
    A("s_load_dwordx16 s[16:31], s[0:1], 0")
    A("s_load_dwordx16 s[32:47], s[0:1], 64")
    A("v_lshrrev_b32 v1, 6, v0")
    A("v_and_b32 v0, 63, v0")
    A("v_readfirstlane_b32 s3, v1")
    A("v_lshlrev_b32 v1, 4, v0")

PROF_OFF = 72*MB
def stamp(A, opts, i):
    if opts.get('prof'):
        A(f"s_memrealtime s[{92+2*i}:{93+2*i}]")
def dump_stamps(A, opts, kidx):
    if not opts.get('prof'): return
    A("s_waitcnt vmcnt(0) lgkmcnt(0)")
    A("s_memrealtime s[4:5]")
    A("s_waitcnt lgkmcnt(0)")
    A(f"s_mov_b32 s8, s{P_WS}")
    A(f"s_mov_b32 s9, s{P_WS+1}")
    A(f"s_mov_b32 s10, {80*MB}")
    A("s_mov_b32 s11, 0x00020000")
    A("s_lshl_b32 s6, s2, 2")
    A("s_add_u32 s6, s6, s3")
    A("s_lshl_b32 s6, s6, 5")
    A(f"s_add_u32 s6, s6, {PROF_OFF + kidx*32768}")
    for i in range(5): A(f"v_mov_b32 v{2+i}, s{92+2*i}")
    A("v_mov_b32 v7, s4")
    A("s_getreg_b32 s7, hwreg(HW_REG_XCC_ID)")
    A("v_mov_b32 v8, s7")
    A("s_sub_u32 s7, s78, s76")
    A("v_mov_b32 v9, s7")
    A("v_mov_b32 v10, 0")
    A("buffer_store_dwordx4 v[2:5], v10, s[8:11], s6 offen")
    A("buffer_store_dwordx4 v[6:9], v10, s[8:11], s6 offen offset:16")

def cyc(A, opts, i):
    if opts.get('prof'):
        A(f"s_memtime s[{76+2*i}:{77+2*i}]")

def lstamp(A, opts, i, vreg):
    if not opts.get('lprof'): return
    if i > 0: A(f"v_writelane_b32 v{vreg}, s{100 if (i-1)%2 else 98}, {i-1}")
    A(f"s_memrealtime s[{100 if i%2 else 98}:{101 if i%2 else 99}]")
def ldump(A, opts, n, vreg):
    if not opts.get('lprof'): return
    A("s_waitcnt vmcnt(0) lgkmcnt(0)")
    A(f"v_writelane_b32 v{vreg}, s{100 if (n-1)%2 else 98}, {n-1}")
    A(f"s_mov_b32 s8, s{P_WS}")
    A(f"s_mov_b32 s9, s{P_WS+1}")
    A(f"s_mov_b32 s10, {80*MB}")
    A("s_mov_b32 s11, 0x00020000")
    A("s_lshl_b32 s6, s2, 2")
    A("s_add_u32 s6, s6, s3")
    A("s_lshl_b32 s6, s6, 8")
    A(f"s_add_u32 s6, s6, {PROF_OFF + MB}")
    A("v_lshlrev_b32 v2, 2, v0")
    A(f"buffer_store_dword v{vreg}, v2, s[8:11], s6 offen")
```

```python
from common import *
import math
QSCALE = math.log2(math.e) / math.sqrt(128.0)
NS = 6
AST = 98304

def dma_a_voff(A, d):
    A(f"""
    v_lshrrev_b32 v30, 2, v0
    v_lshlrev_b32 v30, 10, v30
    v_lshrrev_b32 v31, 4, v0
    v_sub_u32 v32, 0, v31
    v_xor_b32 v32, v32, v0
    v_and_b32 v32, 3, v32
    v_lshl_add_u32 v{d}, v32, 4, v30
    """)
def dma_b_voff(A, d):
    A(f"""
    v_lshrrev_b32 v30, 3, v0
    v_lshlrev_b32 v30, 13, v30
    v_and_b32 v33, 1, v0
    v_lshl_add_u32 v30, v33, 4, v30
    v_bfe_u32 v33, v0, 1, 2
    v_and_b32 v34, 1, v31
    v_xor_b32 v33, v33, v34
    v_lshl_add_u32 v{d}, v33, 5, v30
    v_xor_b32 v33, 2, v33
    v_lshl_add_u32 v{d+1}, v33, 5, v30
    v_add_u32 v{d+1}, 64512, v{d+1}
    v_add_u32 v{d+2}, 129024, v{d}
    v_add_u32 v{d+3}, 129024, v{d+1}
    """)
def rd_a_addr(A, d, sbase):
    A(f"""
    v_bfe_u32 v30, v0, 2, 2
    v_sub_u32 v32, 0, v30
    v_xor_b32 v32, v32, v31
    v_and_b32 v32, 3, v32
    v_and_b32 v33, 15, v0
    v_lshl_add_u32 v32, v33, 2, v32
    v_lshlrev_b32 v32, 4, v32
    v_add_u32 v{d}, {sbase}, v32
    """)
def rd_b_addr(A, d, base):
    A(f"""
    v_lshl_add_u32 v32, v31, 3, v30
    v_lshlrev_b32 v32, 7, v32
    v_and_b32 v33, 3, v0
    v_lshl_add_u32 v32, v33, 3, v32
    v_bfe_u32 v33, v0, 3, 2
    """)
    if base: A(f"v_add_u32 v32, {base}, v32")
    for ct in range(4):
        A(f"v_xor_b32 v34, {ct}, v33")
        A(f"v_lshl_add_u32 v{d+ct}, v34, 5, v32")

def gen_k1(opts={}):
    stf = opts.get('k1_store', 'sc1')
    wfl = opts.get('k1_wfl', '')
    pfl = opts.get('k1_pfl', 'nt')
    LP = opts.get('lprof') == 1
    A = Asm()
    prologue(A, "K1_END")
    stamp(A, opts, 0)
    if LP: lstamp(A, opts, 0, 25)
    SA, SUK, SUV, SWS, SK, SV, SM, SG, SX, SWQ = 48, 52, 56, 60, 64, 68, 72, 80, 84, 24
    vA, vB, vRA, vRB = 2, 6, 10, 11
    A(f"""
    v_lshrrev_b32 v31, 4, v0
    v_lshrrev_b32 v30, 3, v0
    v_lshlrev_b32 v30, 10, v30
    v_and_b32 v32, 7, v0
    v_xor_b32 v32, v32, v31
    v_lshl_add_u32 v{vA}, v32, 4, v30
    v_xor_b32 v32, 4, v32
    v_lshl_add_u32 v{vA+1}, v32, 4, v30
    v_add_u32 v{vA+1}, 7168, v{vA+1}
    v_add_u32 v{vA+2}, 14336, v{vA}
    v_add_u32 v{vA+3}, 14336, v{vA+1}
    """)
    dma_b_voff(A, vB)
    mp = opts.get('k1_map', 4)
    lg = {1: 0, 2: 1, 4: 2, 8: 3}[mp]
    A(f"""
    s_and_b32 s4, s2, {8//mp-1}
    s_lshl_b32 s4, s4, {lg}
    s_lshr_b32 s5, s2, 3
    s_and_b32 s6, s5, {mp-1}
    s_add_u32 s6, s6, s4
    s_and_b32 s7, s2, 7
    s_lshr_b32 s7, s7, {3-lg}
    s_lshl_b32 s7, s7, {5-lg}
    s_lshr_b32 s8, s5, {lg}
    s_add_u32 s7, s7, s8
    s_lshl_b32 s8, s6, 18
    s_lshl_b32 s9, s3, 16
    s_add_u32 s8, s8, s9
    s_lshl_b32 s9, s7, 8
    s_lshl_b32 s10, s3, 18
    s_add_u32 s9, s9, s10
    s_lshl_b32 s11, s3, 12
    s_lshl_b32 s12, s3, 14
    s_add_u32 s12, s12, {AST}
    """)
    A(f"v_lshlrev_b32 v26, {min(5+lg,7)}, v0")
    A(f"v_lshrrev_b32 v29, {lg-1}, v0")
    A(f"v_lshlrev_b32 v29, 13, v29")
    A("s_waitcnt lgkmcnt(0)")
    if LP and opts.get('lp_start'): lstamp(A, opts, 1, 25)
    srd(A, SUK, P_WUK, 4*MB)
    srd(A, SA, P_C, 2*MB)
    dA, dB = {}, {}
    def dmaA(q):
        u, hf = divmod(q, 2)
        ops = [lambda: (A(f"s_add_u32 m0, s12, {(q%4)*4096}"), A(f"s_add_u32 s88, s8, {u*128+hf*32768}"))]
        for j in range(4):
            ops.append(lambda j=j: dA.__setitem__(q, A.vmem(f"buffer_load_dwordx4 v{vA+j}, s[{SA}:{SA+3}], s88 offen offset:{j*1024} lds")))
        return ops
    def dmaB(c):
        sub, kc = divmod(c, 4)
        S = SUK if sub < 2 else SUV
        ops = [lambda: (A(f"s_add_u32 m0, s11, {(c%NS)*16384}"), A(f"s_add_u32 s89, s9, {kc*128*8192+(sub&1)*128}"))]
        for j in range(4):
            ops.append(lambda j=j: dB.__setitem__(c, A.vmem(f"buffer_load_dwordx4 v{vB+j}, s[{S}:{S+3}], s89 offen offset:{j*1024} {wfl} lds")))
        return ops
    tfl = opts.get('k1_tfl', '')
    A(f"""
    s_lshl_b32 s13, s5, 2
    s_add_u32 s13, s13, s3
    s_lshl_b32 s13, s13, {11+lg}
    s_lshl_b32 s14, s4, 18
    s_add_u32 s13, s13, s14
    s_and_b32 s14, s5, {mp-1}
    s_lshl_b32 s14, s14, 2
    s_add_u32 s14, s14, s3
    s_lshl_b32 s14, s14, {13+7-lg}
    s_lshl_b32 s15, s7, 8
    s_add_u32 s15, s15, s14
    """)
    def touchB(sub):
        S = SUK if sub < 2 else SUV
        return lambda: A.vmem(f"buffer_load_dword v83, v29, s[{S}:{S+3}], s15 offen offset:{(sub&1)*128} {tfl}")
    def touchC():
        A.vmem(f"buffer_load_dword v83, v26, s[{SA}:{SA+3}], s13 offen")
        if mp == 8:
            A("s_add_u32 s13, s13, 8192")
            A.vmem(f"buffer_load_dword v83, v26, s[{SA}:{SA+3}], s13 offen")
    order = opts.get('k1_order', 'a0 a1 b0 a2 a3 tc tb0')
    for o in order.split():
        if o[0] == 'a': [f() for f in dmaA(int(o[1]))]
        elif o[0] == 'b': [f() for f in dmaB(int(o[1]))]
        elif o == 'tc': touchC()
        else: touchB(int(o[2]))()
        if o == 'b0': srd(A, SUV, P_WUV, 4*MB)
    A(f"""
    v_and_b32 v33, 15, v0
    v_lshlrev_b32 v32, 7, v33
    v_add_u32 v32, s12, v32
    v_lshrrev_b32 v33, 1, v33
    v_xor_b32 v33, v33, v31
    v_lshl_add_u32 v{vRA}, v33, 4, v32
    v_xor_b32 v33, 4, v33
    v_lshl_add_u32 v55, v33, 4, v32
    v_bfe_u32 v30, v0, 2, 2
    """)
    rd_b_addr(A, vRB, 0)
    for ct in range(4): A(f"v_add_u32 v{vRB+4+ct}, 0x10000, v{vRB+ct}")
    srd(A, SWS, P_WS, WS_USED)
    A(f"""
    s_lshl_b32 s13, s7, 19
    s_lshl_b32 s14, s6, 16
    s_add_u32 s13, s13, s14
    s_lshl_b32 s14, s3, 14
    s_add_u32 s13, s13, s14
    s_mov_b32 s90, {hexf(QSCALE)}
    """)

    def stream():
        q = []
        class D:
            def __call__(self, t):
                for l in t.strip().split('\n'):
                    if l.strip(): q.append(lambda l=l: A(l))
            def vmem(self, t, tag=None):
                q.append(lambda: ids.__setitem__(tag, A.vmem(t)))
            def wait(self, tag): q.append(lambda: A.wait(vm=ids[tag]))
            def ds(self, t, tag=None): q.append(lambda: ids.__setitem__(tag, A.ds(t)))
            def waitlg(self, tag): q.append(lambda: A.wait(lg=ids[tag]))
        return q, D()
    ids = {}
    pl, D = stream()
    srd(D, SK, P_K, 2*MB); srd(D, SV, P_V, 2*MB); srd(D, SM, P_SHIFT, 4096); srd(D, SG, P_GATE, 1024); srd(D, SX, P_X, 2*MB)
    kr, vr, wsh, pa = 36, 47, 56, 19
    gx, gw = 60, 68
    D(f"""
    s_lshr_b32 s42, s2, 3
    s_lshl_b32 s42, s42, 6
    s_lshl_b32 s43, s3, 4
    s_add_u32 s42, s42, s43
    v_lshrrev_b32 v30, 5, v0
    v_and_b32 v31, 31, v0
    v_lshlrev_b32 v32, 3, v30
    v_add_u32 v32, s42, v32
    s_and_b32 s43, s2, 7
    s_lshl_b32 s44, s43, 7
    v_lshlrev_b32 v33, 10, v32
    v_lshl_add_u32 v33, v31, 2, v33
    v_add_u32 v{pa+1}, s44, v33
    v_subrev_u32 v{pa}, 3072, v{pa+1}
    v_add_u32 v{pa+2}, 4096, v{pa+1}
    s_lshl_b32 s44, s43, 9
    v_lshlrev_b32 v33, 4, v31
    v_add_u32 v{pa+3}, s44, v33
    s_lshl_b32 s44, s3, 5
    s_add_u32 s44, s44, {AST}
    v_lshlrev_b32 v33, 8, v31
    v_lshl_add_u32 v33, v30, 4, v33
    v_add_u32 v{pa+4}, s44, v33
    s_lshl_b32 s44, s43, 18
    s_lshl_b32 s45, s3, 16
    s_add_u32 s44, s44, s45
    s_lshr_b32 s45, s2, 3
    s_lshl_b32 s45, s45, 7
    s_add_u32 s44, s44, s45
    s_add_u32 s44, s44, {U_OFF}
    v_lshrrev_b32 v33, 3, v0
    v_lshlrev_b32 v33, 12, v33
    v_and_b32 v34, 7, v0
    v_lshl_add_u32 v33, v34, 4, v33
    v_add_u32 v{pa+5}, s44, v33
    s_lshl_b32 s44, s2, 3
    s_lshl_b32 s45, s3, 1
    s_add_u32 s44, s44, s45
    v_add_u32 v32, s44, v30
    v_lshlrev_b32 v26, 5, v31
    v_lshl_add_u32 v27, v32, 10, v26
    v_and_b32 v32, 7, v32
    v_lshlrev_b32 v32, 2, v32
    v_add_u32 v32, {AST+8192}, v32
    v_cmp_eq_u32 vcc, 31, v31
    v_mov_b32 v33, {AST+8192+64}
    s_nop 0
    v_cndmask_b32 v28, v33, v32, vcc
    """)
    D.vmem(f"buffer_load_dwordx4 {v(gx,4)}, v27, s[{SX}:{SX+3}], 0 offen")
    D.vmem(f"buffer_load_dwordx4 {v(gx+4,4)}, v27, s[{SX}:{SX+3}], 0 offen offset:16")
    D.vmem(f"buffer_load_dwordx4 {v(gw,4)}, v26, s[{SG}:{SG+3}], 0 offen")
    D.vmem(f"buffer_load_dwordx4 {v(gw+4,4)}, v26, s[{SG}:{SG+3}], 0 offen offset:16")
    D.vmem(f"buffer_load_dwordx4 {v(wsh,4)}, v{pa+3}, s[{SM}:{SM+3}], 0 offen")
    for r in range(11):
        b, o = (pa, r) if r < 3 else ((pa+1, r-3) if r < 7 else (pa+2, r-7))
        D.vmem(f"buffer_load_dword v{kr+r}, v{b}, s[{SK}:{SK+3}], 0 offen offset:{o*1024} {pfl}")
    for r in range(8):
        b, o = (pa+1, r) if r < 4 else (pa+2, r-4)
        D.vmem(f"buffer_load_dword v{vr+r}, v{b}, s[{SV}:{SV+3}], 0 offen offset:{o*1024} {pfl}", 'prep')
    gap = opts.get('k1_plgap', 0)
    pl = pl[:-24] + [f for g in pl[-24:] for f in [g] + [lambda: None]*gap]
    prep, P = stream()
    P.wait('prep')
    ga = 30
    P(f"v_mov_b32 v{ga}, 0")
    for i in range(8): P(f"v_dot2c_f32_bf16 v{ga}, v{gx+i}, v{gw+i}")
    P("s_nop 3")
    for sh in (1, 2, 4, 8):
        P(f"v_add_f32_dpp v{ga}, v{ga}, v{ga} row_shr:{sh} row_mask:0xf bank_mask:0xf bound_ctrl:0")
        P("s_nop 1")
    P(f"""
    v_add_f32_dpp v{ga}, v{ga}, v{ga} row_bcast:15 row_mask:0xa bank_mask:0xf
    v_cvt_pk_bf16_f32 v{ga}, v{ga}, v{ga}
    v_lshlrev_b32 v{ga}, 16, v{ga}
    v_mul_f32 v{ga}, {hexf(-math.log2(math.e))}, v{ga}
    v_exp_f32 v{ga}, v{ga}
    s_nop 0
    v_add_f32 v{ga}, 1.0, v{ga}
    v_rcp_f32 v{ga}, v{ga}
    s_nop 0
    v_cvt_pk_bf16_f32 v{ga}, v{ga}, v{ga}
    v_lshlrev_b32 v{ga}, 16, v{ga}
    """)
    P.ds(f"ds_write_b32 v28, v{ga}")
    kf, wf, uo, pk = 60, 71, 75, 32
    def unp(d, src, ch):
        return f"v_lshlrev_b32 v{d}, 16, v{src}" if ch == 0 else f"v_and_b32 v{d}, 0xffff0000, v{src}"
    for ch in range(2):
        for r in range(11): P(unp(kf+r, kr+r, ch))
        for i in range(4): P(unp(wf+i, wsh+2*ch+i//2, i % 2))
        for t in range(4):
            for r in range(8):
                if t == 0: P(f"v_mul_f32 v{uo+r}, v{kf+r}, v{wf+3}")
                else: P(f"v_fmac_f32 v{uo+r}, v{kf+r+t}, v{wf+3-t}")
        for r in range(8): P(unp(kf+r, vr+r, ch))
        for r in range(8): P(f"v_mul_f32 v{uo+r}, v{uo+r}, v{kf+r}")
        for j in range(4): P(f"v_cvt_pk_bf16_f32 v{pk+j}, v{uo+7-2*j}, v{uo+6-2*j}")
        P.ds(f"ds_write_b128 v{pa+4}, {v(pk,4)} offset:{ch*128}", 'uw')
    P.waitlg('uw')
    prep.append(lambda: prep_done.append(curk[0]))
    prep_done = []
    pst, P2 = stream()
    P2(f"""
    s_lshl_b32 s42, s3, 11
    s_add_u32 s42, s42, {AST}
    v_add_u32 v30, s42, v1
    v_lshlrev_b32 v31, 2, v0
    v_add_u32 v32, {AST+8192}, v31
    """)
    P2.ds(f"ds_read_b128 v[60:63], v30")
    P2.ds(f"ds_read_b128 v[64:67], v30 offset:1024")
    P2.ds(f"ds_read_b32 v68, v32", 'ur')
    P2(f"""
    v_add_u32 v30, 32768, v{pa+5}
    s_lshl_b32 s42, s2, 7
    s_add_u32 s42, s42, {G_OFF}
    s_lshl_b32 s43, s3, 30
    s_add_u32 s42, s42, s43
    v_and_b32 v31, 127, v31
    """)
    P2.waitlg('ur')
    P2.vmem(f"buffer_store_dwordx4 v[60:63], v{pa+5}, s[{SWS}:{SWS+3}], 0 offen {stf}")
    P2.vmem(f"buffer_store_dwordx4 v[64:67], v30, s[{SWS}:{SWS+3}], 0 offen {stf}")
    P2("s_mov_b32 exec_hi, 0")
    P2.vmem(f"buffer_store_dword v68, v31, s[{SWS}:{SWS+3}], s42 offen {stf}")
    P2("s_mov_b32 exec_hi, -1")
    g_ = pst[-3:]; pst[-3:] = [lambda: [f() for f in g_]]
    tch, T = stream()
    if opts.get('k1_touch2', 1):
        srd(T, SWQ, P_WQ, 4*MB)
        T(f"""
        s_lshl_b32 s42, s5, 2
        s_add_u32 s42, s42, s3
        s_lshl_b32 s43, s42, 14
        v_lshlrev_b32 v26, 6, v0
        v_lshrrev_b32 v27, 4, v0
        v_lshlrev_b32 v27, 13, v27
        v_and_b32 v31, 15, v0
        v_lshl_add_u32 v27, v31, 6, v27
        s_lshl_b32 s42, s42, 15
        s_and_b32 s45, s2, 7
        s_lshl_b32 s45, s45, 10
        s_add_u32 s42, s42, s45
        """)
        T.vmem(f"buffer_load_dword v83, v27, s[{SWQ}:{SWQ+3}], s42 offen")
    def touchX():
        A.vmem(f"buffer_load_dword v83, v26, s[{SX}:{SX+3}], s43 offen")
        A("s_add_u32 s43, s43, 4096")

    BF, ET = 96, 84
    def acc(sub, rt, ct): return 128 + (sub & 1)*64 + (rt*4+ct)*4
    cnt = [0]
    def epi(sub, sel=range(8)):
        q, E = stream()
        half = sub & 1
        for i in sel:
            t = (ET + (cnt[0] % 2)*4) if sub < 3 else ET + 8; cnt[0] += 1
            if sub == 3 and i == 7: t = ET
            if sub < 2:
                rt, p = divmod(i, 2)
                lo, hi = acc(sub, rt, 2*p), acc(sub, rt, 2*p+1)
                for r in list(range(lo, lo+4)) + list(range(hi, hi+4)): E(f"v_mul_f32 v{r}, s90, v{r}")
                so, imm = K_OFF + rt*4096, (2*half+p)*1024
            else:
                pp, ct = divmod(i, 4)
                lo, hi = acc(sub, 2*pp, ct), acc(sub, 2*pp+1, ct)
                so, imm = V_OFF + pp*8192 + half*4096, ct*1024
            E(f"v_cvt_pk_bf16_f32 v{t}, v{lo}, v{lo+1}")
            E(f"v_cvt_pk_bf16_f32 v{t+1}, v{lo+2}, v{lo+3}")
            E(f"v_cvt_pk_bf16_f32 v{t+2}, v{hi}, v{hi+1}")
            E(f"v_cvt_pk_bf16_f32 v{t+3}, v{hi+2}, v{hi+3}")
            sr = 91 if sub < 3 else 14
            E(f"s_add_u32 s{sr}, s13, {so}")
            E.vmem(f"buffer_store_dwordx4 {v(t,4)}, v1, s[{SWS}:{SWS+3}], s{sr} offen offset:{imm} {stf}")
        q.append(lambda: epi_done.__setitem__(sub, curk[0]))
        return q
    epi_done, curk = {}, [0]
    rA, rB = {}, {}
    def readsA(q):
        u, hf = divmod(q, 2)
        return [(lambda r=r, par=par: rA.__setitem__(q, A.ds(f"ds_read_b128 {a(((2*u+par)*4+2*hf+r)*4,4)}, v{55 if par else vRA} offset:{(q%4)*4096+r*2048}"))) for par in range(2) for r in range(2)]
    CTM = opts.get('k1_ctm', 1)
    def stepfr(k):
        if k >= 48 and CTM:
            ct, g = divmod(k-48, 4)
            return [(12+g, f, ct) for f in range(4)]
        return [(k//4, k % 4, ct) for ct in range(4)]
    def readsB(k):
        out = []
        for f, (c, ksl, ct) in enumerate(stepfr(k)):
            sl = c % NS
            for sec in range(2):
                out.append(lambda f=f, sl=sl, ksl=ksl, ct=ct, sec=sec: rB.__setitem__(k, A.ds(f"ds_read_b64_tr_b16 {v(BF+(k&1)*16+f*4+2*sec,2)}, v{vRB+4*(sl>>2)+ct} offset:{(sl&3)*16384+ksl*4096+sec*512}")))
        return out
    bsched = opts.get('k1_bsched', {1: 1, 2: 3, 3: 6, 4: 11, 5: 13, 6: 16, 7: 19, 8: 21, 9: 24, 10: 26, 11: 29, 12: 31, 13: 34, 14: 36, 15: 39})
    bsched = {int(c): k for c, k in bsched.items()}
    for c, k in bsched.items(): assert k >= 4*(c-NS)+3 and k < 4*c-1
    if LP and opts.get('lp_start'): lstamp(A, opts, 2, 25)
    A.wait(vm=max(dB[0], dA[1]))
    A("s_barrier")
    stamp(A, opts, 1); cyc(A, opts, 0)
    if LP and opts.get('lp_start'): lstamp(A, opts, 3, 25)
    for f in readsA(0) + readsA(1) + readsB(0): f()
    NK = 64
    lo = []; ep = []; e3 = []
    apos = opts.get('k1_apos', 10)
    for k in range(NK):
        sub, ks = divmod(k, 16)
        curk[0] = k
        if ks == 0 and sub >= 2: assert sub-2 in epi_done, sub
        if k == 16: stamp(A, opts, 2)
        lgw = rB[k]
        if sub == 0: lgw = max(lgw, rA[min(ks+1, 15)])
        newchunk = (k + 1) % 4 == 0 and k + 1 < NK and not (CTM and k > 47)
        A.wait(vm=dB[15 if (CTM and k == 47) else (k+1)//4] if newchunk else None, lg=lgw)
        if LP and not opts.get('lp_start') and k % 2 == 0: lstamp(A, opts, k//2+1, 25)
        if LP and opts.get('lp_start') and k < 29: lstamp(A, opts, k+4, 25)
        rq = readsB(k+1) if k + 1 < NK else []
        ra = readsA(k+2) if k + 2 < 16 else []
        dq = dmaA(k+5) if k + 5 < 16 else []
        if k == 0: dq = dmaA(4) + dq
        if opts.get('k1_touch', 1):
            for sub_, kk in opts.get('k1_tsched', {2: 11, 3: 12}).items():
                if kk == k: dq = dq + [touchB(int(sub_))]
        for c, kk in bsched.items():
            if kk == k: dq = dq + dmaB(c)
        if k == opts.get('k1_plk', 13): lo = lo + pl
        if k == opts.get('k1_prepk', 28): lo = lo + prep
        if k == opts.get('k1_tchk', 48): lo = lo + tch
        if ks == 1 and sub >= 1: ep = epi(sub-1); epn = len(ep); ep0 = opts.get('k1_ep0', 7) if sub == 1 else 1
        if opts.get('k1_touch2', 1) and k in opts.get('k1_xsched', ()): dq = dq + [touchX]
        ndq = len(dq)
        for i in range(16):
            f_, rt = divmod(i, 4)
            c_, ksl_, ct = stepfr(k)[f_]
            kk_ = (c_ % 4)*4 + ksl_
            d = v(acc(sub, rt, ct), 4)
            b = v(BF+(k&1)*16+f_*4, 4); ar = a((kk_*4+rt)*4, 4)
            cin = d if kk_ else "0"
            A(f"{MF} {d}, {b}, {ar}, {cin}" if sub < 2 else f"{MF} {d}, {ar}, {b}, {cin}")
            if i == 0 and newchunk:
                A("s_barrier")
                if prep_done and pst: lo = lo + pst; pst = []
            n = 0
            if rq and (ra or i % 2 == 0): rq.pop(0)(); n += 1
            elif ra and i >= apos:
                if len(ra) == 4: A.wait(vm=dA[k+2])
                ra.pop(0)(); n += 1
            if dq and ndq - len(dq) < (ndq*(i+1)+14)//15: dq.pop(0)(); n += 1
            if ep and ks >= ep0:
                want = epn * ((ks-ep0)*16 + i + 1) // ((15-ep0)*16)
                if epn - len(ep) < want: ep.pop(0)(); n += 1
            if CTM and k in (52, 56, 60) and i == 9: e3 = e3 + epi(3, [(k-52)//4, 4+(k-52)//4])
            if e3 and i % 4 == 1: e3.pop(0)(); n += 1
            while lo and n < 2: lo.pop(0)(); n += 1
        assert not rq and not dq and not ra, (k, len(rq), len(dq), len(ra))
    assert not ep and not pst
    assert not lo
    stamp(A, opts, 3); cyc(A, opts, 1)
    A("s_nop 7")
    assert not e3
    for f in epi(3, [3, 7] if CTM else range(8)): f()
    stamp(A, opts, 4)
    if LP: lstamp(A, opts, 33, 25); ldump(A, opts, 34, 25)
    dump_stamps(A, opts, 0)
    A("K1_END:")
    A("s_endpgm")
    return A
if __name__ == "__main__":
    A = gen_k1()
    print("hazards:", check(A.L, "k1"), "instrs", len(A.L))
```

```python
from common import *
from k1 import dma_a_voff, dma_b_voff, rd_a_addr, rd_b_addr
BIG = 2.0**60
THR = 2.0**20
LA = 4
vK, vV, XB, TMP = 2, 3, 4, 6
SC = 7
L0, S0, E0, P0, C0, CM, O0 = 16, 48, 112, 120, 152, 168, 192
ET = 176
HR = 192
aQ, aK, aV, aO, aONE = 0, 64, 96, 128, 192
SWS, SH = 48, 52
sK, sKend, sM, sV, sT, sTA, sTB, sC0, sTHR = 56, 57, 59, 60, 61, 62, 63, 68, 73
def Lreg(par, n): return L0 + par*16 + n*4
def Sreg(par, T, n, j=0): return S0 + par*32 + (n*2+T)*4 + j
def Preg(par, n, d=0): return P0 + par*16 + n*4 + d
def Creg(n): return C0 + n*4
def Oacc(n): return n % 2 == 0
def Oidx(dt, n, j=0): return (aO if Oacc(n) else O0) + (n//2)*32 + dt*4 + j
def Oop(dt, n): return (a if Oacc(n) else v)(Oidx(dt, n), 4)
def elems(ns): return [(T, n, j) for n in ns for T in range(2) for j in range(4)]
UB = 131072
RED = 73728

def xlane(A, op, r, t):
    for sw in ("v_permlane16_swap_b32", "v_permlane32_swap_b32"):
        A(f"v_mov_b32 v{t}, v{r}")
        A("s_nop 1")
        A(f"{sw} v{r}, v{t}")
        A(f"{op} v{r}, v{r}, v{t}")

def gen_k2(opts={}):
    stf = opts.get('k2_store', 'sc1')
    A = Asm()
    slow = []
    prologue(A, "K2_END")
    stamp(A, opts, 0)
    LP = opts.get('lprof') == 2
    if LP: lstamp(A, opts, 0, 15)
    SX, SWQ = 84, 88
    qA, qB, qRA, qRB = 16, 20, 24, 25
    dma_a_voff(A, qA)
    dma_b_voff(A, qB)
    A(f"""
    s_and_b32 s4, s2, 7
    s_lshl_b32 s4, s4, 2
    s_bfe_u32 s5, s2, 0x20003
    s_add_u32 s4, s4, s5
    s_lshr_b32 s5, s2, 5
    s_sub_u32 s7, 15, s5
    s_lshl_b32 s7, s7, 3
    s_lshl_b32 s8, s5, 3
    s_sub_u32 s9, 7, s3
    s_add_u32 s10, s7, s3
    s_add_u32 s11, s7, s9
    s_add_u32 s12, s8, s3
    s_add_u32 s13, s8, s9
    s_lshl_b32 s{sM}, s3, 12
    s_lshr_b32 s64, s3, 1
    s_lshl_b32 s64, s64, 18
    s_and_b32 s14, s3, 1
    s_lshl_b32 s14, s14, 7
    s_add_u32 s64, s64, s14
    s_lshl_b32 s14, s4, 8
    s_add_u32 s64, s64, s14
    """)
    for j, src in ((3, 11), (2, 10), (1, 13), (0, 12)):
        A(f"s_lshl_b32 s14, s{src}, 14")
        if j: A(f"s_sub_u32 s14, s14, {j*1024}")
        A(f"v_add_u32 v{qA+j}, s14, v{qA}")
    A("s_waitcnt lgkmcnt(0)")
    srd(A, SWQ, P_WQ, 4*MB)
    srd(A, SX, P_X, 2*MB)
    dA, dB = {}, {}
    def qslot(ks): return (1 + (ks+2) % 3)*16384
    def qdmaA(ks):
        ops = [lambda: (A(f"s_add_u32 m0, s{sM}, {qslot(ks)}"), A(f"s_mov_b32 s65, {ks*64}"))]
        for j in range(4):
            ops.append(lambda j=j: dA.__setitem__(ks, A.vmem(f"buffer_load_dwordx4 v{qA+j}, s[{SX}:{SX+3}], s65 offen offset:{j*1024} lds")))
        return ops
    def qdmaB(st):
        ops = [lambda: (A(f"s_add_u32 m0, s{sM}, {65536+(st&3)*16384}"), A(f"s_add_u32 s66, s64, {st*64*8192}"))]
        for j in range(4):
            ops.append(lambda j=j: dB.__setitem__(st, A.vmem(f"buffer_load_dwordx4 v{qB+j}, s[{SWQ}:{SWQ+3}], s66 offen offset:{j*1024} lds")))
        return ops
    for f in qdmaB(0) + qdmaA(0) + qdmaA(1) + qdmaB(1) + qdmaA(2): f()
    rd_a_addr(A, qRA, f"s{sM}")
    rd_b_addr(A, qRB, 65536)
    A(f"""
    s_lshl_b32 s6, s4, 19
    s_add_u32 s{sK}, s6, s{sM}
    s_add_u32 s{sK}, s{sK}, {K_OFF}
    s_sub_u32 s7, 16, s5
    s_lshl_b32 s8, s7, 15
    s_add_u32 s{sKend}, s{sK}, s8
    s_lshl_b32 s{sTB}, s5, 1
    s_lshl_b32 s8, s5, 2
    s_sub_u32 s{sTA}, 27, s8
    s_lshl_b32 s14, s4, 12
    s_add_u32 s14, s14, {CTX_OFF}
    """)
    for k_, src in enumerate((10, 11, 12, 13)):
        A(f"s_lshl_b32 s15, s{src}, 17")
        A(f"s_add_u32 s{sC0+k_}, s15, s14")
    A(f"s_mov_b32 s{sTHR}, {hexf(THR)}")
    A("v_mov_b32 v32, 0x3f803f80")
    for i_ in range(4): A(f"v_accvgpr_write_b32 a{aONE+i_}, v32")
    A(f"""
    v_and_b32 v32, 15, v0
    v_lshlrev_b32 v33, 2, v31
    v_sub_u32 v33, v32, v33
    s_lshl_b32 s7, s3, 4
    s_lshl_b32 s8, s9, 4
    v_add_u32 v{XB}, s7, v33
    v_add_u32 v{XB+1}, s8, v33
    v_cvt_f32_i32 v{XB}, v{XB}
    v_cvt_f32_i32 v{XB+1}, v{XB+1}
    v_mul_f32 v{XB}, {hexf(BIG)}, v{XB}
    v_mul_f32 v{XB+1}, {hexf(BIG)}, v{XB+1}
    v_mov_b32 v{vK}, v1
    """)
    srd(A, SWS, P_WS, WS_USED)
    srd(A, SH, P_SSMK, 2*MB)
    def dmaK():
        return [lambda j=j: A.vmem(f"buffer_load_dwordx4 v1, s[{SWS}:{SWS+3}], s{sK} offen offset:{j*1024} lds") for j in range(4)]
    def dma_iter():
        ops = []
        ops.append(lambda: A(f"s_add_u32 m0, s{sM}, 65536"))
        ops.append(lambda: A(f"s_add_u32 s{sV}, s{sK}, {V_OFF-K_OFF}"))
        ops += [lambda j=j: A.vmem(f"buffer_load_dwordx4 v1, s[{SWS}:{SWS+3}], s{sV} offen offset:{j*1024} lds") for j in range(4)]
        ops.append(lambda: A(f"s_add_u32 s{sK}, s{sK}, 16384"))
        ops.append(lambda: (A(f"s_cmp_ge_u32 s{sK}, s{sKend}"), A(f"s_cselect_b32 s{sK}, 0x40000000, s{sK}")))
        ops.append(lambda: A(f"s_add_u32 s{sM}, s{sM}, 16384"))
        ops.append(lambda: A(f"s_and_b32 s{sM}, s{sM}, 0xffff"))
        ops.append(lambda: A(f"s_mov_b32 m0, s{sM}"))
        ops.append(lambda: None)
        ops += dmaK()
        return ops
    def pf_wo():
        srd(A, 80, P_WO, 4*MB)
        mode = opts.get('k2_pfwo', 'end')
        if mode == 'start':
            A("""
            s_lshl_b32 s84, s2, 2
            s_add_u32 s84, s84, s3
            s_lshl_b32 s84, s84, 12
            v_lshlrev_b32 v13, 6, v0
            """)
            A.vmem("buffer_load_dword v14, v13, s[80:83], s84 offen")
        elif opts.get('k3_map', 'r512') == 'r256':
            A("""
            s_lshr_b32 s84, s2, 3
            s_lshl_b32 s84, s84, 2
            s_add_u32 s84, s84, s3
            s_lshl_b32 s84, s84, 15
            v_lshlrev_b32 v13, 7, v0
            """)
            for i_ in range(4):
                A.vmem("buffer_load_dword v14, v13, s[80:83], s84 offen")
                A("s_add_u32 s84, s84, 8192")
        else:
            A("""
            s_lshr_b32 s84, s2, 3
            s_lshl_b32 s84, s84, 2
            s_add_u32 s84, s84, s3
            s_lshl_b32 s84, s84, 15
            s_and_b32 s85, s2, 1
            s_lshl_b32 s85, s85, 9
            s_add_u32 s84, s84, s85
            v_lshrrev_b32 v13, 2, v0
            v_lshlrev_b32 v13, 10, v13
            v_and_b32 v14, 3, v0
            v_lshl_add_u32 v13, v14, 7, v13
            """)
            for i_ in range(2):
                A.vmem("buffer_load_dword v14, v13, s[80:83], s84 offen")
                A("s_add_u32 s84, s84, 16384")
    def conv_loads():
        A(f"""
        s_lshl_b32 s7, s2, 13
        s_lshl_b32 s8, s3, 10
        s_add_u32 s7, s7, s8
        s_add_u32 s8, s7, 4096
        v_subrev_u32 v{SC}, 16, v1
        s_lshl_b32 s10, s3, 6
        v_add_u32 v{SC+1}, s10, v0
        v_cmp_eq_u32 vcc, 0, v{SC+1}
        v_add_u32 v{SC+1}, s8, v{SC}
        v_add_u32 v{SC}, s7, v{SC}
        v_mov_b32 v{TMP}, 0x80000000
        v_cndmask_b32 v{SC}, v{SC}, v{TMP}, vcc
        v_cndmask_b32 v{SC+1}, v{SC+1}, v{TMP}, vcc
        """)
        A.vmem(f"buffer_load_dwordx4 {a(224,4)}, v{SC}, s[{SH}:{SH+3}], 0 offen")
        A.vmem(f"buffer_load_dwordx4 {a(228,4)}, v1, s[{SH}:{SH+3}], s7 offen")
        A.vmem(f"buffer_load_dwordx4 {a(232,4)}, v{SC+1}, s[{SH}:{SH+3}], 0 offen")
        A.vmem(f"buffer_load_dwordx4 {a(236,4)}, v1, s[{SH}:{SH+3}], s8 offen")
        A(f"""
        s_add_u32 s7, s7, {U_OFF}
        s_add_u32 s8, s8, {U_OFF}
        s_lshl_b32 s10, s3, 10
        s_add_u32 m0, s10, {UB+512}
        s_nop 0
        """)
        A.vmem(f"buffer_load_dwordx4 v1, s[{SWS}:{SWS+3}], s7 offen lds")
        A(f"s_add_u32 m0, s10, {UB+4608+512}")
        A("s_nop 0")
        A.vmem(f"buffer_load_dwordx4 v1, s[{SWS}:{SWS+3}], s8 offen lds")
        if opts.get('k2_pfwo', 'end') == 'start': pf_wo()
    A(f"""
    s_lshl_b32 s10, s2, 2
    s_load_dword s75, s[{P_SSMD}:{P_SSMD+1}], s10
    v_mov_b32 v32, 0
    v_mov_b32 v33, 0
    v_lshrrev_b32 v34, 1, v1
    v_add_u32 v34, {UB}, v34
    ds_write_b64 v34, v[32:33]
    ds_write_b64 v34, v[32:33] offset:4608
    """)
    def qacc(j, ct): return 64 + (j*8+ct)*4
    rA, rB = {}, {}
    def qreadsA(ks):
        return [(lambda j=j: rA.__setitem__(ks, A.ds(f"ds_read_b128 {a(64+(ks&1)*16+j*4,4)}, v{qRA} offset:{qslot(ks)+j*1024}"))) for j in range(4)]
    def qreadsB(ks):
        st, ksl = divmod(ks, 2)
        return [(lambda ct=ct, sec=sec: rB.__setitem__(ks, A.ds(f"ds_read_b64_tr_b16 {a(96+(ks&1)*32+ct*4+2*sec,2)}, v{qRB+(ct&3)} offset:{(st&3)*16384+ksl*8192+(ct>>2)*4096+sec*512}"))) for ct in range(8) for sec in range(2)]
    A.wait(vm=dA[0])
    A("s_waitcnt lgkmcnt(0)")
    A("s_barrier")
    stamp(A, opts, 1)
    for f in qreadsA(0) + qreadsB(0): f()
    def qcvt(j):
        n = (j + 2) % 4
        out = []
        for p in range(4):
            for d in range(4):
                out.append(f"v_cvt_pk_bf16_f32 v{192+j*16+p*4+d}, v{qacc(j,2*p+d//2)+(d%2)*2}, v{qacc(j,2*p+d//2)+(d%2)*2+1}")
            for d in range(4):
                out.append(f"v_accvgpr_write_b32 a{aQ+n*16+p*4+d}, v{192+j*16+p*4+d}")
        return out
    cv = []
    for ks in range(16):
        newst = (ks + 1) % 2 == 0 and ks + 1 < 16
        A.wait(vm=dB[(ks+1)//2] if newst else None, lg=max(rA[ks], rB[ks]))
        if LP: lstamp(A, opts, ks+1, 15)
        rq = qreadsB(ks+1) if ks + 1 < 16 else []
        ra = qreadsA(ks+1) if ks + 1 < 16 else []
        dq = qdmaA(ks+3) if ks + 3 < 16 else []
        if ks % 2 == 0 and ks//2 + 2 < 8: dq = dq + qdmaB(ks//2+2)
        if ks == 12: dq = dq + [lambda: A(f"s_mov_b32 m0, s{sM}")] + dmaK()
        if ks >= 13: dq = dq + dma_iter()
        for i in range(32):
            j, ct = divmod(i, 8)
            d = v(qacc(j, ct), 4)
            A(f"{MF} {d}, {a(96+(ks&1)*32+ct*4,4)}, {a(64+(ks&1)*16+j*4,4)}, {d if ks else 0}")
            if i == 0 and newst: A("s_barrier")
            if rq: rq.pop(0)()
            elif ra and i >= 20:
                if len(ra) == 4: A.wait(vm=dA[ks+1])
                ra.pop(0)()
            if dq and i % 2 == 1: dq.pop(0)()
            if ks == 15:
                if i % 8 == 4 and i >= 8: cv += qcvt(i//8 - 1)
                for _ in range(2):
                    if cv: A(cv.pop(0))
        assert not rq and not ra and not dq, (ks, len(rq), len(ra), len(dq))
    for o in cv: A(o)
    A("s_nop 3")
    for o in qcvt(3): A(o)
    if LP: lstamp(A, opts, 17, 15)

    rd = {}
    def readK(x, half): rd[('K', x)] = A.ds(f"ds_read_b128 {a(aK+x*4,4)}, v{vK} offset:{half*8192+x*1024}")
    def readV(x, half): rd[('V', x)] = A.ds(f"ds_read_b128 {a(aV+x*4,4)}, v{vV} offset:{half*8192+x*1024}")
    adv_ops = [f"v_add_u32 v{vV}, 0x10000, v{vK}", f"v_add_u32 v{vK}, 0x4000, v{vK}", f"v_and_b32 v{vK}, 0xffff, v{vK}"]
    def maskops(n, d):
        ops = [f"v_add_f32 v{CM+T*4+j}, {hexf((0.5-32*d-16*T-j)*BIG)}, v{XB+n%2}" for T in range(2) for j in range(4)]
        ops += [f"v_min_f32 v{CM+i_}, v{CM+i_}, v{Creg(n)}" for i_ in range(8)]
        return ops
    lab = [0]
    def cond_mask(n, d, val):
        lab[0] += 1
        A(f"s_cmp_eq_u32 s5, {val}")
        A(f"s_cbranch_scc1 K2_MK{lab[0]}")
        for i_ in range(8): A(f"v_mov_b32 v{CM+i_}, v{Creg(n)}")
        A(f"K2_NM{lab[0]}:")
        A("s_nop 1")
        B = Asm()
        B(f"K2_MK{lab[0]}:")
        for o in maskops(n, d): B(o)
        B(f"s_branch K2_NM{lab[0]}")
        slow.append(B)
    def slow_path(par, sm, nxt):
        lab[0] += 1
        n_ = lab[0]
        A(f"s_cbranch_vccnz K2_SLOW{n_}")
        A(f"K2_BACK{n_}:")
        B = Asm()
        B(f"K2_SLOW{n_}:")
        B("s_nop 7"); B("s_nop 3")
        m, t, f = SC, SC+1, SC+2
        for n in sm:
            r = [Sreg(par, T, n, j) for T in range(2) for j in range(4)]
            lo = Lreg(par^1, n)
            B(f"v_log_f32 v{t}, v{lo}")
            B(f"v_max3_f32 v{m}, v{r[0]}, v{r[1]}, v{r[2]}")
            B(f"v_max3_f32 v{m}, v{m}, v{r[3]}, v{r[4]}")
            B(f"v_max3_f32 v{m}, v{m}, v{r[5]}, v{r[6]}")
            B(f"v_max3_f32 v{m}, v{m}, v{r[7]}, 0")
            B(f"v_max_f32 v{m}, v{m}, v{t}")
            xlane(B, "v_max_f32", m, t)
            B(f"v_exp_f32 v{f}, -v{m}")
            for j in range(4): B(f"v_sub_f32 v{Creg(n)+j}, v{Creg(n)+j}, v{m}")
            for j in range(4): B(f"v_mul_f32 v{lo+j}, v{lo+j}, v{f}")
            for dt in range(8):
                for j in range(4):
                    o = Oidx(dt, n, j)
                    if Oacc(n):
                        B(f"v_accvgpr_read_b32 v{t}, a{o}"); B(f"v_mul_f32 v{t}, v{t}, v{f}"); B(f"v_accvgpr_write_b32 a{o}, v{t}")
                    else: B(f"v_mul_f32 v{o}, v{o}, v{f}")
            for T in range(2):
                for j in range(4):
                    B(f"v_sub_f32 v{Sreg(par,T,n,j)}, v{Sreg(par,T,n,j)}, v{m}")
                    B(f"v_sub_f32 v{Sreg(par^1,T,n,j)}, v{Sreg(par^1,T,n,j)}, v{m}")
            for i_, rr in enumerate(r): B(f"v_exp_f32 v{E0+i_}, v{rr}")
            B("s_nop 0")
            for d in range(4): B(f"v_cvt_pk_bf16_f32 v{Preg(par,n,d)}, v{E0+2*d}, v{E0+2*d+1}")
            B("s_nop 1")
            B(f"{MF} {v(Lreg(par,n),4)}, {a(aONE,4)}, {v(Preg(par,n),4)}, {v(lo,4)}")
        for e, (T, n, j) in enumerate(elems(nxt)[:LA]):
            B(f"v_exp_f32 v{E0+e}, v{Sreg(par^1,T,n,j)}")
        B("s_nop 7")
        B(f"s_branch K2_BACK{n_}")
        slow.append(B)

    def period(par, qk, sm, pv, nxt, kread, vread, advance, masked=None, mem=(), extra=(), bar=False, after_pre=None, sc_end=()):
        M = []
        units = []
        if qk:
            for x in range(8):
                T, ks = divmod(x, 4)
                for n in qk:
                    d = v(Sreg(par^1, T, n), 4)
                    c = d if ks else (v(CM+T*4, 4) if n == masked else v(Creg(n), 4))
                    M.append((f"{MF} {d}, {a(aK+x*4,4)}, {a(aQ+n*16+ks*4,4)}, {c}", len(units)))
                units.append(('K', x))
        nqk = len(M)
        if pv:
            for x in range(8):
                for n in pv:
                    M.append((f"{MF} {Oop(x,n)}, {a(aV+x*4,4)}, {v(Preg(par^1,n),4)}, {Oop(x,n)}", len(units)))
                units.append(('V', x))
        last_of = {}; first_of = {}
        for i_, (_, u) in enumerate(M): last_of[u] = i_; first_of.setdefault(u, i_)
        D = []
        if vread is not None:
            if qk: D += [(first_of[x], lambda x=x: readV(x, vread)) for x in range(8)]
            else:
                for x in range(8): readV(x, vread)
        if after_pre: after_pre()
        nv = len(D)
        if kread is not None:
            if qk and pv: D += [(first_of[8+x], lambda x=x: readK(x, kread)) for x in range(8)]
            else: D += [(last_of[x], lambda x=x: readK(x, kread)) for x in range(8)]
        advq = list(adv_ops) if advance else []
        if advance and nv == 0:
            for o in advq: A(o)
            advq = []
        el = elems(sm); ne = len(el)
        X = [('c', e) for e in range(LA, ne)] + [('n', e) for e in range(min(LA, len(elems(nxt))))]
        nx = elems(nxt)
        exp_at = {e: -9 for e in range(min(LA, ne))}
        cvt_next = 0
        cvt_at = {}
        sums = list(sm); sum_at = {}
        chk = []
        if sm:
            ls = [Lreg(par, n) for n in sm]
            if len(ls) == 1: chk = [f"v_cmp_lt_f32 vcc, s{sTHR}, v{ls[0]}"]
            else:
                if len(ls) == 2: chk = [f"v_max_f32 v{TMP}, v{ls[0]}, v{ls[1]}"]
                else: chk = [f"v_max3_f32 v{TMP}, v{ls[0]}, v{ls[1]}, v{ls[2]}"]
                if len(ls) == 4: chk.append(f"v_max_f32 v{TMP}, v{TMP}, v{ls[3]}")
                chk.append(f"v_cmp_lt_f32 vcc, s{sTHR}, v{TMP}")
        mem = list(mem); extra = list(extra); sc_end = list(sc_end)
        G = len(M) + len(sums)
        nX, nE, nmem = len(X), len(extra), len(mem)
        pos = lambda: len(A.L)
        mf_at = {}
        def valu_ready():
            nonlocal cvt_next
            if cvt_next < ne//2:
                e = 2*cvt_next + 1
                if e in exp_at and pos() - exp_at[e] >= 2:
                    T, n, j = el[e]
                    A(f"v_cvt_pk_bf16_f32 v{Preg(par,n,2*T+j//2)}, v{E0+(e-1)%8}, v{E0+e%8}")
                    cvt_at[cvt_next] = pos(); cvt_next += 1
                    return True
            if chk and not sums and pos() - max(sum_at.values()) >= 8:
                A(chk.pop(0)); return True
            if advq and len(D) <= (8 if kread is not None else 0):
                A(advq.pop(0)); return True
            return False
        def exp_ok():
            kind, e = X[0]
            ge = e if kind == 'c' else ne + e
            if ge >= 8 and (ge - 8)//2 >= cvt_next: return False
            if kind == 'n':
                T, n, j = nx[e]
                w = ((T*4+3)*len(qk) + qk.index(n))
                if w not in mf_at or pos() - mf_at[w] < 8: return False
            return True
        def do_exp():
            kind, e = X.pop(0)
            if kind == 'c':
                T, n, j = el[e]; A(f"v_exp_f32 v{E0+e%8}, v{Sreg(par,T,n,j)}"); exp_at[e] = pos() - 1
            else:
                T, n, j = nx[e]; A(f"v_exp_f32 v{E0+e%8}, v{Sreg(par^1,T,n,j)}")
        waited = set()
        def need_wait(i_next):
            for look in range(0, 3):
                i2 = i_next + look
                if i2 < len(M):
                    g4 = M[i2][1]//4
                    if g4 not in waited and all(units[y] in rd and not any(False for _ in ()) for y in range(g4*4, g4*4+4)):
                        pend = [units[y] for y in range(g4*4, g4*4+4)]
                        if pend[0][0] == 'V' and qk and vread is not None and (len(D) - (8 if kread is not None else 0)) > 7 - pend[3][1]: continue
                        return g4, look == 0
            return None, False
        def emit_wait(g4):
            waited.add(g4)
            n0 = pos(); A.wait(lg=max(rd[units[y]] for y in range(g4*4, g4*4+4))); return pos() > n0
        barq = ["s_waitcnt vmcnt(8)", "s_barrier"] if bar else []
        def scalar_slot(i_next, g):
            if barq: A(barq.pop(0)); return True
            g4, _ = need_wait(i_next)
            if g4 is not None and emit_wait(g4): return True
            if mem and mem[0][0] == 's' : mem.pop(0)[1](); return True
            if sc_end and not mem and g >= G - 8: sc_end.pop(0)(); return True
            return False
        i = 0; g = 0; prevDA = False
        xend = max(G - 1, 1)
        while i < len(M) or sums:
            n = sums[0] if sums else None
            took = False
            if n is not None:
                lastpair = (sm.index(n)+1)*4 - 1
                if lastpair in cvt_at and pos() - cvt_at[lastpair] >= 2:
                    A(f"{MF} {v(Lreg(par,n),4)}, {a(aONE,4)}, {v(Preg(par,n),4)}, {v(Lreg(par^1,n),4)}")
                    sum_at[n] = pos(); sums.pop(0); took = True
            if not took:
                if i < len(M):
                    g4, now = need_wait(i)
                    while M[i][1]//4 not in waited and not (g4 is not None and now):
                        while barq: A(barq.pop(0))
                        D.pop(0)[1]()
                        g4, now = need_wait(i)
                    if g4 is not None and now: emit_wait(g4)
                    assert M[i][1]//4 in waited, (i, M[i])
                    A(M[i][0]); mf_at[i] = pos(); i += 1
                else:
                    if X and X[0][0] == 'c' and exp_ok(): do_exp()
                    elif not valu_ready(): A("s_nop 0")
                    continue
            g += 1
            behind = (nX - len(X)) < nX * g / xend
            dready = D and D[0][0] < i and not barq and not (advq and len(D) <= 8 and kread is not None and nv)
            xready = X and exp_ok()
            vleft = len(D) - (8 if kread is not None else 0)
            urgent = nv and vleft > 0 and vleft*2 > nqk - i + 2
            if urgent and barq:
                while barq: A(barq.pop(0))
                dready = True
            if dready and (urgent or not prevDA or not (xready and behind)):
                D.pop(0)[1](); prevDA = True
                gdue = mem and mem[0][0] == 'g' and not barq and (nmem - len(mem)) <= nmem * g / max(G - 4, 1)
                if gdue: mem.pop(0)[1]()
                elif valu_ready(): pass
                elif extra: extra.pop(0)()
                else: scalar_slot(i, g)
            elif xready and behind:
                scalar_slot(i, g); do_exp(); prevDA = False
            else:
                prevDA = False
                if mem and mem[0][0] == 'g' and not barq and not D and not A.L[-2].strip().startswith('s_mov_b32 m0'):
                    mem.pop(0)[1](); k_ = 1
                else: scalar_slot(i, g); k_ = 2
                for _ in range(k_):
                    if valu_ready(): pass
                    elif extra: extra.pop(0)()
            while X and exp_ok() and (nX - len(X)) < nX * g / xend - 1:
                do_exp(); valu_ready()
            while extra and (nE - len(extra)) < nE * g / G - 2: extra.pop(0)()
        while barq: A(barq.pop(0))
        while X or chk or advq or D or mem or extra or sc_end or cvt_next < ne//2:
            if D and not advq: D.pop(0)[1]()
            elif mem:
                if mem[0][0] == 'g' and 'm0,' in A.L[-1]: A("s_nop 0")
                mem.pop(0)[1]()
            elif valu_ready(): pass
            elif X and exp_ok(): do_exp()
            elif extra: extra.pop(0)()
            elif sc_end: sc_end.pop(0)()
            else: A("s_nop 0")
        if sm: slow_path(par, sm, nxt)

    def mem_iter():
        d = dma_iter()
        kinds = "ssggggsSsss-gggg"
        out = []
        for k_, f in zip(kinds, d):
            if k_ == '-': continue
            if k_ == 'S':
                out.append(('s', lambda: A(f"s_cmp_ge_u32 s{sK}, s{sKend}")))
                out.append(('s', lambda: A(f"s_cselect_b32 s{sK}, 0x40000000, s{sK}")))
            else: out.append((k_, f))
        return out
    def epilogue_ops(n, par):
        ops = [f"v_rcp_f32 v{SC+4}, v{Lreg(par,n)}", "s_nop 0"]
        out = [(lambda o=o: A(o)) for o in ops]
        for ks in range(4):
            t = ET + (ks % 2)*8 if Oacc(n) else None
            src = []
            for hi in range(2):
                for j in range(4):
                    o = Oidx(2*ks+hi, n, j)
                    if Oacc(n):
                        r = t + hi*4 + j
                        out.append(lambda r=r, o=o: A(f"v_accvgpr_read_b32 v{r}, a{o}"))
                    else: r = o
                    src.append(r)
            for r in src: out.append(lambda r=r: A(f"v_mul_f32 v{r}, v{r}, v{SC+4}"))
            for d in range(4): out.append(lambda d=d, src=src: A(f"v_cvt_pk_bf16_f32 v{src[0]+d}, v{src[2*d]}, v{src[2*d+1]}"))
            out.append(lambda ks=ks, src=src: A.vmem(f"buffer_store_dwordx4 {v(src[0],4)}, v1, s[{SWS}:{SWS+3}], s{sC0+n} offen offset:{ks*1024} {stf}".rstrip()))
        return out
    nsec = [0]
    def sec():
        if opts.get('lprof') != 4: return
        A("s_memtime s[98:99]")
        A("s_waitcnt lgkmcnt(0)")
        A(f"v_writelane_b32 v15, s98, {nsec[0]}"); nsec[0] += 1
    loops = []
    def loop(name, ns, cnt_reg):
        A(".p2align 6")
        A(f"{name}:")
        l0 = len(A.L)
        A.lg_done = A.lg - 8
        m = mem_iter()
        period(1, ns, ns, ns, ns, 1, 0, False, mem=m[:9], bar=True)
        period(0, ns, ns, ns, ns, 0, 1, True, mem=m[9:], sc_end=[lambda: A(f"s_sub_u32 s{cnt_reg}, s{cnt_reg}, 1"), lambda: A(f"s_cmp_lg_u32 s{cnt_reg}, 0")])
        A(f"s_cbranch_scc1 {name}")
        loops.append(A.L[l0:])
        A.lg_done = A.lg - 8
    def emit(ops):
        for o in ops: A(o)
        A("s_nop 1")
    def masked_iter(ns, n):
        m = mem_iter()
        emit(maskops(n, 0)); period(1, ns, ns, ns, ns, 1, 0, False, masked=n, mem=m[:9], bar=True)
        emit(maskops(n, 1)); period(0, ns, ns, ns, ns, 0, 1, True, masked=n, mem=m[9:])
    def last_iter(full, n0, n1, kmore):
        m = mem_iter()
        allt, red = full + (n0, n1), full + (n1,)
        emit(maskops(n1, 2)); period(1, red, allt, allt, red, 1, 0, False, masked=n1, mem=m[:9], bar=True)
        emit(maskops(n1, 3)); period(0, red, red, allt, red, 0 if kmore else None, 1, True, masked=n1, mem=m[9:])
    ALL, AB, BB = (0, 1, 2, 3), (0, 1), (2, 3)
    if opts.get('prof'):
        A("s_waitcnt vmcnt(16)")
        cyc(A, opts, 0)
    sec()
    A("s_waitcnt vmcnt(16)")
    A("s_barrier")
    stamp(A, opts, 2)
    for x in range(8): readK(x, 0)
    conv_loads()
    for i_ in range(16): A(f"v_mov_b32 v{C0+i_}, 0")
    cond_mask(2, 0, 0)
    zero = [(lambda i_=i_: A(f"v_mov_b32 v{O0+i_}, 0")) for i_ in range(64)] + [(lambda i_=i_: A(f"v_accvgpr_write_b32 a{aO+i_}, 0")) for i_ in range(64)]
    zero += [(lambda i_=i_: A(f"v_mov_b32 v{Lreg(1,0)+i_}, 0")) for i_ in range(16)]
    z1, z2 = zero[:56], zero[56:]
    period(1, ALL, (), (), (), 1, None, False, masked=2, extra=z1)
    for _ in range(8): z2.pop()()
    mx = ET
    for n in ALL:
        r = [Sreg(0, T, n, j) for T in range(2) for j in range(4)]
        A(f"v_max3_f32 v{mx+n}, v{r[0]}, v{r[1]}, v{r[2]}")
        A(f"v_max3_f32 v{mx+n}, v{mx+n}, v{r[3]}, v{r[4]}")
        A(f"v_max3_f32 v{mx+n}, v{mx+n}, v{r[5]}, v{r[6]}")
        A(f"v_max_f32 v{mx+n}, v{mx+n}, v{r[7]}")
    for sw in ("v_permlane16_swap_b32", "v_permlane32_swap_b32"):
        for n in ALL: A(f"v_mov_b32 v{mx+4+n}, v{mx+n}")
        for n in ALL: A(f"{sw} v{mx+n}, v{mx+4+n}")
        for n in ALL: A(f"v_max_f32 v{mx+n}, v{mx+n}, v{mx+4+n}")
    for n in ALL:
        for j in range(4): A(f"v_sub_f32 v{Creg(n)+j}, 0, v{mx+n}")
    cond_mask(2, 1, 0)
    for _ in range(8): z2.pop()()
    for (T, n, j) in elems(ALL): A(f"v_sub_f32 v{Sreg(0,T,n,j)}, v{Sreg(0,T,n,j)}, v{mx+n}")
    for e in range(LA):
        T, n, j = elems(ALL)[e]; A(f"v_exp_f32 v{E0+e}, v{Sreg(0,T,n,j)}")
    period(0, ALL, ALL, (), ALL, 0, None, True, masked=2, extra=z2)
    sec()
    A("s_cmp_eq_u32 s5, 0")
    A("s_cbranch_scc1 K2_LASTD")
    A(f"s_sub_u32 s{sTB}, s{sTB}, 1")
    loop("K2_LOOPD", ALL, sTB)
    sec()
    masked_iter(ALL, 2)
    A("K2_LASTD:")
    sec()
    A.lg_done = A.lg - 8
    last_iter(AB, 2, 3, True)
    sec()
    m = mem_iter(); e0 = epilogue_ops(2, 1); h = len(e0)//3
    cond_mask(0, 0, 7)
    period(1, AB, (0, 1, 3), (0, 1, 3), AB, 1, 0, False, masked=0, mem=m, bar=True)
    cond_mask(0, 1, 7)
    period(0, AB, AB, (0, 1, 3), AB, 0, 1, True, masked=0, extra=e0)
    sec()
    A("s_nop 3")
    for f in epilogue_ops(3, 1): f()
    sec()
    A("s_cmp_eq_u32 s5, 7")
    A("s_cbranch_scc1 K2_LASTS")
    loop("K2_LOOPS", AB, sTA)
    sec()
    masked_iter(AB, 0)
    A("K2_LASTS:")
    sec()
    A.lg_done = A.lg - 8
    last_iter((), 0, 1, False)
    sec()
    A("s_waitcnt vmcnt(8)")
    A("s_barrier")
    e0 = epilogue_ops(0, 1); h = len(e0)//2
    period(1, (), (1,), (1,), (), None, 0, False, extra=e0[:h])
    period(0, (), (), (1,), (), None, 1, False, extra=e0[h:])
    sec()
    A("s_nop 7")
    for f in epilogue_ops(1, 1): f()
    sec()
    stamp(A, opts, 3)
    cyc(A, opts, 1)
    A("s_waitcnt vmcnt(8)")
    A("s_barrier")
    if opts.get('k2_pfwo', 'end') == 'end': pf_wo()
    Z = 16
    for i_ in range(16): A(f"v_accvgpr_read_b32 v{HR+i_}, a{224+i_}")
    A(f"s_lshl_b32 s7, s3, 10")
    A(f"v_add_u32 v2, s7, v1")
    for ch in range(2):
        W = HR + 8*ch
        zb = Z + 24*ch
        for i_ in range(7): A(f"v_alignbit_b32 v{zb+i_}, v{W+i_+1}, v{W+i_}, 16")
        for i_ in range(1, 7): A(f"v_alignbit_b32 v{zb+8+i_-1}, v{W+i_+1}, v{W+i_}, 16")
        for i_ in range(1, 7): A(f"v_mov_b32 v{zb+16+i_-1}, v{W+i_}")
        src = {0: zb, 2: zb+8, 4: zb+2, 6: zb+8+2, 1: zb+16, 3: W+2, 5: zb+16+2, 7: W+4}
        for ci in range(8):
            A.ds(f"ds_write_b128 v2, {v(src[ci],4)} offset:{ch*33280+ci*4160+16}")
    A(f"""
    v_and_b32 v3, 15, v0
    v_mul_u32_u24 v3, 4160, v3
    v_mov_b32 v64, 0
    v_mov_b32 v65, 0
    v_mov_b32 v66, 0
    v_mov_b32 v67, 0
    """)
    A.ds("ds_write_b128 v3, v[64:67]")
    A(f"""
    s_lshr_b32 s7, s3, 1
    s_and_b32 s8, s3, 1
    v_and_b32 v4, 7, v0
    v_mul_u32_u24 v4, 4160, v4
    v_bfe_u32 v5, v0, 3, 1
    v_lshrrev_b32 v6, 4, v0
    v_add_u32 v5, v5, v6
    v_lshl_add_u32 v4, v5, 4, v4
    s_mul_i32 s9, s7, 33280
    s_lshl_b32 s10, s8, 8
    s_add_u32 s9, s9, s10
    v_add_u32 v4, s9, v4
    v_and_b32 v7, 15, v0
    v_lshlrev_b32 v5, 1, v7
    v_sub_u32 v5, v5, v6
    v_lshlrev_b32 v5, 4, v5
    s_mul_i32 s9, s7, 4608
    s_add_u32 s9, s9, {UB+512+16-192}
    s_sub_u32 s11, s9, s10
    v_add_u32 v5, s11, v5
    s_waitcnt lgkmcnt(0)
    s_barrier
    """)
    A.lg_done = A.lg
    aF, aG = 96, 160
    ACC = 128
    rdc = {}
    def creads(rho):
        b = rho & 1
        out = []
        for i_ in range(8):
            out.append(lambda i_=i_: rdc.__setitem__(('F', rho, i_), A.ds(f"ds_read_b128 {a(aF+32*b+4*i_,4)}, v4 offset:{i_*512+rho*64}")))
            out.append(lambda i_=i_: rdc.__setitem__(('G', rho, i_), A.ds(f"ds_read_b128 {a(aG+32*b+4*i_,4)}, v5 offset:{i_*512+(3-rho)*64}")))
        return out
    for f in creads(0): f()
    first = set()
    for rho in range(4):
        b = rho & 1
        nx = creads(rho+1) if rho < 3 else []
        pairs = sorted([(t, s_) for t in range(8) for s_ in range(8) if t+s_ < 8], key=lambda p: (max(p), p))
        for i_, (t, s_) in enumerate(pairs):
            A.wait(lg=max(rdc[('F', rho, t)], rdc[('G', rho, s_)]))
            nt = t + s_
            d = v(ACC+4*nt, 4)
            A(f"{MF} {d}, {a(aF+32*b+4*t,4)}, {a(aG+32*b+4*s_,4)}, {d if nt in first else 0}")
            first.add(nt)
            if nx and i_ % 2 == 1 and i_ >= 3: nx.pop(0)()
        assert not nx
    A(f"""
    v_lshrrev_b32 v8, 1, v6
    v_lshl_add_u32 v8, v7, 1, v8
    v_lshlrev_b32 v8, 4, v8
    v_and_b32 v9, 1, v6
    v_xor_b32 v9, 1, v9
    v_lshl_add_u32 v8, v9, 3, v8
    s_mul_i32 s9, s7, 4608
    s_lshl_b32 s10, s8, 11
    s_add_u32 s9, s9, s10
    s_add_u32 s9, s9, {UB+512}
    v_add_u32 v8, s9, v8
    s_lshl_b32 s9, s3, 12
    s_add_u32 s9, s9, {RED}
    v_add_u32 v10, s9, v1
    s_xor_b32 s9, s9, 4096
    v_add_u32 v11, s9, v1
    """)
    assert RED % 8192 == 0
    for i_ in range(4): A.ds(f"ds_read_b64 {v(16+2*i_,2)}, v8 offset:{i_*512}")
    A("s_cmp_eq_u32 s8, 0")
    A("s_cbranch_scc0 K2_CV1")
    for i_ in range(4): A(f"ds_write_b128 v10, {v(ACC+16+4*i_,4)} offset:{i_*1024}")
    A("s_branch K2_CV2")
    A("K2_CV1:")
    for i_ in range(4): A(f"ds_write_b128 v10, {v(ACC+4*i_,4)} offset:{i_*1024}")
    A("s_nop 1")
    for i_ in range(16): A(f"v_mov_b32 v{ACC+i_}, v{ACC+16+i_}")
    A("K2_CV2:")
    A("s_waitcnt lgkmcnt(0)")
    A("s_barrier")
    for i_ in range(4): A(f"ds_read_b128 {v(32+4*i_,4)}, v11 offset:{i_*1024}")
    A(f"""
    s_lshl_b32 s9, s75, 16
    s_and_b32 s10, s75, 0xffff0000
    s_cmp_eq_u32 s7, 0
    s_cselect_b32 s9, s9, s10
    s_lshl_b32 s10, s2, 13
    s_lshl_b32 s11, s7, 12
    s_add_u32 s10, s10, s11
    s_lshl_b32 s11, s8, 11
    s_add_u32 s10, s10, s11
    s_add_u32 s10, s10, {Z_OFF}
    v_lshlrev_b32 v12, 5, v7
    v_lshl_add_u32 v12, v6, 3, v12
    """)
    for i_ in range(4):
        A(f"v_and_b32 v48, 0xffff0000, v{16+2*i_+1}")
        A(f"v_lshlrev_b32 v49, 16, v{16+2*i_+1}")
        A(f"v_and_b32 v50, 0xffff0000, v{16+2*i_}")
        A(f"v_lshlrev_b32 v51, 16, v{16+2*i_}")
        for j in range(4): A(f"v_fmac_f32 v{ACC+4*i_+j}, s9, v{48+j}")
    A("s_waitcnt lgkmcnt(0)")
    for i_ in range(4):
        for j in range(4): A(f"v_add_f32 v{ACC+4*i_+j}, v{ACC+4*i_+j}, v{32+4*i_+j}")
        A(f"v_cvt_pk_bf16_f32 v{52+2*i_}, v{ACC+4*i_}, v{ACC+4*i_+1}")
        A(f"v_cvt_pk_bf16_f32 v{52+2*i_+1}, v{ACC+4*i_+2}, v{ACC+4*i_+3}")
        A(f"buffer_store_dwordx2 {v(52+2*i_,2)}, v12, s[{SWS}:{SWS+3}], s10 offen offset:{i_*512}")
    stamp(A, opts, 4)
    if LP: ldump(A, opts, 18, 15)
    if opts.get('lprof') == 4: sec(); ldump(A, opts, 40, 15)
    dump_stamps(A, opts, 1)
    A("K2_END:")
    A("s_endpgm")
    A.cold = [l for B in slow for l in B.L]
    return A, [l + l for l in loops]
if __name__ == "__main__":
    A, ex = gen_k2()
    print("hazards:", check(A.L, "k2") + sum(check(e, "k2x") for e in ex), "instrs", len(A.L))
```

```python
from common import *
def gen_k3(opts={}):
    A = Asm()
    prologue(A, "K3_END")
    stamp(A, opts, 0)
    if opts.get('lprof') == 3: lstamp(A, opts, 0, 29)
    SWS, SWO, SX, SO = 48, 52, 56, 60
    NB = opts.get('k3_depth', 4)
    RING = 8
    if opts.get('k3_map', 'r512') == 'r256':
        A("""
        s_and_b32 s4, s2, 7
        s_lshl_b32 s4, s4, 2
        s_bfe_u32 s5, s2, 0x20003
        s_add_u32 s4, s4, s5
        s_lshr_b32 s5, s2, 5
        """)
    else:
        A("""
        s_bfe_u32 s4, s2, 0x20001
        s_lshl_b32 s4, s4, 3
        s_bfe_u32 s5, s2, 0x30003
        s_add_u32 s4, s4, s5
        s_and_b32 s5, s2, 1
        s_lshl_b32 s5, s5, 2
        s_lshr_b32 s6, s2, 6
        s_add_u32 s5, s5, s6
        """)
    A("""
    v_lshrrev_b32 v30, 3, v0
    v_lshlrev_b32 v30, 10, v30
    v_and_b32 v31, 1, v0
    v_lshl_add_u32 v30, v31, 4, v30
    v_bfe_u32 v31, v0, 1, 2
    v_lshrrev_b32 v32, 4, v0
    v_xor_b32 v31, v31, v32
    v_lshl_add_u32 v2, v31, 5, v30
    v_add_u32 v3, 7168, v2
    v_add_u32 v4, 14336, v2
    v_add_u32 v5, 21504, v2
    """)
    A("""
    v_lshrrev_b32 v30, 2, v0
    v_lshlrev_b32 v30, 7, v30
    v_and_b32 v31, 3, v0
    v_lshl_add_u32 v30, v31, 3, v30
    s_lshl_b32 s6, s3, 15
    v_add_u32 v30, s6, v30
    v_bfe_u32 v31, v0, 3, 2
    """)
    for ct in range(4):
        A(f"v_xor_b32 v33, {ct}, v31")
        A(f"v_lshl_add_u32 v{6+ct}, v33, 5, v30")
    for rt in range(4): A(f"v_add_u32 v{10+rt}, {rt*131072}, v1")
    A(f"""
    s_lshl_b32 s7, s4, 19
    s_add_u32 s7, s7, s6
    s_add_u32 s7, s7, {CTX_OFF}
    s_lshl_b32 s8, s3, 20
    s_lshl_b32 s9, s5, 7
    s_add_u32 s8, s8, s9
    s_waitcnt lgkmcnt(0)
    """)
    srd(A, SWS, P_WS, WS_USED)
    srd(A, SWO, P_WO, 4*MB)
    last = {}
    def loads(k):
        sl = k % RING
        ops = []
        ops.append(lambda: (A(f"s_add_u32 m0, s6, {sl*4096}"), A(f"s_add_u32 s10, s8, {k*32768}")))
        for j in range(4):
            ops.append(lambda j=j: A.vmem(f"buffer_load_dwordx4 v{2+j}, s[{SWO}:{SWO+3}], s10 offen offset:{j*1024} lds"))
        if k % 4 == 0: ops.append(lambda: A(f"s_add_u32 s11, s7, {k*1024}"))
        for rt in range(4):
            def f(rt=rt): last[k] = A.vmem(f"buffer_load_dwordx4 {a(sl*16+rt*4,4)}, v{10+rt}, s[{SWS}:{SWS+3}], s11 offen offset:{(k%4)*1024} {opts.get('k3_cfl','')}")
            ops.append(f)
        return ops
    tsched = opts.get('k3_touch', {})
    def touch(wd):
        A(f"s_add_u32 s65, s64, {wd*8192}")
        A.vmem(f"buffer_load_dword v35, v34, s[{SWS}:{SWS+3}], s65 offen")
    if tsched:
        A(f"""
        s_bfe_u32 s64, s2, 0x20001
        s_lshl_b32 s64, s64, 5
        s_lshr_b32 s65, s2, 3
        s_add_u32 s64, s64, s65
        s_lshl_b32 s64, s64, 17
        s_add_u32 s64, s64, s6
        s_add_u32 s64, s64, {CTX_OFF}
        v_lshlrev_b32 v34, 7, v0
        """)
        for wd, kk in tsched.items():
            if kk == -2: touch(int(wd))
    for k in range(2):
        for f in loads(k): f()
    for wd, kk in tsched.items():
        if kk == -1: touch(int(wd))
    srd(A, SX, P_X, 2*MB)
    srd(A, SO, P_OUT, 2*MB)
    ZL = 131072
    A(f"""
    v_lshrrev_b32 v30, 1, v0
    v_lshlrev_b32 v30, 12, v30
    v_and_b32 v31, 1, v0
    v_lshl_add_u32 v14, v31, 4, v30
    v_add_u32 v15, {32*4096-1024}, v14
    s_lshl_b32 s12, s5, 18
    s_lshl_b32 s13, s4, 7
    s_add_u32 s12, s12, s13
    s_lshl_b32 s13, s3, 5
    s_add_u32 s12, s12, s13
    s_add_u32 s12, s12, {Z_OFF}
    s_lshl_b32 s13, s3, 11
    s_add_u32 s13, s13, {ZL}
    s_mov_b32 m0, s13
    v_and_b32 v30, 15, v0
    s_lshl_b32 s14, s4, 6
    s_lshl_b32 s15, s3, 4
    s_add_u32 s14, s14, s15
    v_add_u32 v30, s14, v30
    v_lshlrev_b32 v16, 10, v30
    v_lshl_add_u32 v16, v32, 3, v16
    v_add_u32 v16, s9, v16
    v_lshrrev_b32 v17, 3, v30
    v_lshlrev_b32 v17, 7, v17
    v_and_b32 v31, 7, v30
    v_lshl_add_u32 v17, v31, 2, v17
    v_add_u32 v17, {G_OFF}, v17
    v_lshrrev_b32 v30, 2, v0
    v_lshlrev_b32 v30, 5, v30
    v_and_b32 v31, 3, v0
    v_lshl_add_u32 v30, v31, 3, v30
    v_add_u32 v18, s13, v30
    """)
    A.vmem(f"buffer_load_dwordx4 v14, s[{SWS}:{SWS+3}], s12 offen lds")
    A.vmem(f"buffer_load_dwordx4 v15, s[{SWS}:{SWS+3}], s12 offen offset:1024 lds")
    for ct in range(4):
        A.vmem(f"buffer_load_dwordx2 {v(20+2*ct,2)}, v16, s[{SX}:{SX+3}], 0 offen offset:{ct*32}")
    A.vmem(f"buffer_load_dword v19, v17, s[{SWS}:{SWS+3}], 0 offen")
    for k in range(2, NB):
        for f in loads(k): f()
    BF, ACC = 64, 128
    rdB = {}
    def breads(k):
        sl = k % RING
        return [(lambda ct=ct, sec=sec: rdB.__setitem__(k, A.ds(f"ds_read_b64_tr_b16 {v(BF+(k&1)*16+ct*4+2*sec,2)}, v{6+ct} offset:{sl*4096+sec*2048}"))) for ct in range(4) for sec in range(2)]
    A.wait(vm=last[0])
    stamp(A, opts, 1)
    cyc(A, opts, 0)
    for f in breads(0): f()
    NK = 32
    for k in range(NK):
        bq = []
        if k == 16: stamp(A, opts, 2)
        if k + 1 < NK:
            A.wait(vm=last[k+1], lg=rdB[k])
            bq = breads(k+1)
        else: A.wait(lg=rdB[k])
        if opts.get('lprof') == 3: lstamp(A, opts, k+1, 29)
        lq = loads(k+NB) if k + NB < NK else []
        for wd, kk in tsched.items():
            if kk == k: lq = lq + [lambda wd=wd: touch(int(wd))]
        sl = k % RING
        for i in range(16):
            rt, ct = divmod(i, 4)
            d = v(ACC+(rt*4+ct)*4, 4)
            A(f"{MF} {d}, {v(BF+(k&1)*16+ct*4,4)}, {a(sl*16+rt*4,4)}, {d if k else 0}")
            if i % 2 == 0 and bq: bq.pop(0)()
            if lq and (i % 2 == 1 or len(lq) > (16-i)//2): lq.pop(0)()
        assert not bq and not lq
    stamp(A, opts, 3)
    cyc(A, opts, 1)
    for ct in range(4): A.ds(f"ds_read_b64_tr_b16 {v(40+2*ct,2)}, v18 offset:{ct*512}")
    A("s_barrier")
    A("s_lshl_b32 s10, s3, 12")
    A("v_add_u32 v30, s10, v1")
    A("s_lshl_b32 s10, s3, 14")
    A("v_add_u32 v31, s10, v1")
    A("s_nop 3")
    for rt in range(4):
        for ct in range(4):
            A.ds(f"ds_write_b128 v30, {v(ACC+(rt*4+ct)*4,4)} offset:{rt*16384+ct*1024}")
    A("s_waitcnt lgkmcnt(0)")
    A("s_barrier")
    ids = []
    for ct in range(4):
        for src in range(4):
            ids.append(A.ds(f"ds_read_b128 {v(ACC+(ct*4+src)*4,4)}, v31 offset:{src*4096+ct*1024}"))
    A("v_sub_f32 v28, 1.0, v19")
    for ct in range(4):
        for j in range(4):
            xr, zr = 20+2*ct+j//2, 40+2*ct+j//2
            if j % 2 == 0:
                A(f"v_lshlrev_b32 v48, 16, v{xr}"); A(f"v_lshlrev_b32 v49, 16, v{zr}")
            else:
                A(f"v_and_b32 v48, 0xffff0000, v{xr}"); A(f"v_and_b32 v49, 0xffff0000, v{zr}")
            A(f"v_mul_f32 v48, v48, v49")
            A(f"v_mul_f32 v{64+ct*4+j}, v48, v19")
    for ct in range(4):
        A.wait(lg=ids[ct*4+3])
        b = ACC + ct*16
        for j in range(4):
            A(f"v_add_f32 v{b+j}, v{b+j}, v{b+4+j}")
            A(f"v_add_f32 v{b+8+j}, v{b+8+j}, v{b+12+j}")
        for j in range(4):
            A(f"v_add_f32 v{b+j}, v{b+j}, v{b+8+j}")
        for j in range(4):
            A(f"v_fmac_f32 v{64+ct*4+j}, v{b+j}, v28")
        A(f"v_cvt_pk_bf16_f32 v{50+2*ct}, v{64+ct*4}, v{64+ct*4+1}")
        A(f"v_cvt_pk_bf16_f32 v{50+2*ct+1}, v{64+ct*4+2}, v{64+ct*4+3}")
        A(f"buffer_store_dwordx2 {v(50+2*ct,2)}, v16, s[{SO}:{SO+3}], 0 offen offset:{ct*32}")
    stamp(A, opts, 4)
    if opts.get('lprof') == 3: lstamp(A, opts, 33, 29); ldump(A, opts, 34, 29)
    dump_stamps(A, opts, 2)
    A("K3_END:")
    A("s_endpgm")
    return A, []
if __name__ == "__main__":
    A, ex = gen_k3()
    print("hazards:", check(A.L, "k3"), "instrs", len(A.L))
```

```python
from asmlib import *
MB = 1 << 20
Q_OFF, K_OFF, V_OFF, CTX_OFF, U_OFF, Z_OFF, G_OFF = 0, 16*MB, 32*MB, 48*MB, 64*MB, 66*MB, 68*MB
WS_USED = 68*MB + 32768
P_X, P_K, P_V, P_SHIFT, P_SSMK, P_SSMD, P_BX, P_C, P_WQ, P_WUK, P_WUV, P_WO, P_GATE, P_OUT, P_DBG, P_WS = [16+2*i for i in range(16)]
MF = "v_mfma_f32_16x16x32_bf16"
import struct
def f2u(x): return struct.unpack('<I', struct.pack('<f', x))[0]
def hexf(x): return "0x%08x" % f2u(x)

SCRAMBLE = set()
CODEPF = {}
def prologue(A, end_label):
    A(f"s_cmp_ge_u32 s2, 256")
    A(f"s_cbranch_scc1 {end_label}")
    if end_label[1] in SCRAMBLE:
        A("s_mul_i32 s2, s2, 37")
        A("s_lshr_b32 s3, s2, 5")
        A("s_and_b32 s3, s3, 7")
        A("s_xor_b32 s2, s2, s3")
        A("s_and_b32 s2, s2, 255")
    A("s_load_dwordx16 s[16:31], s[0:1], 0")
    A("s_load_dwordx16 s[32:47], s[0:1], 64")
    A("v_lshrrev_b32 v1, 6, v0")
    A("v_and_b32 v0, 63, v0")
    A("v_readfirstlane_b32 s3, v1")
    A("v_lshlrev_b32 v1, 4, v0")
    if CODEPF.get(end_label[1]):
        k = end_label[1]
        A("s_getpc_b64 s[4:5]")
        A(f"K{k}_PC:")
        A(f"s_mov_b32 s6, {CODEPF[k]} - K{k}_PC")
        A("s_mov_b32 s7, 0x00020000")
        A("s_lshr_b32 s8, s2, 3")
        A("s_lshl_b32 s8, s8, 2")
        A("s_add_u32 s8, s8, s3")
        A("s_lshl_b32 s8, s8, 13")
        A("v_lshlrev_b32 v2, 7, v0")
        A.vmem("buffer_load_dword v255, v2, s[4:7], s8 offen")

PROF_OFF = 72*MB
def stamp(A, opts, i):
    if opts.get('prof'):
        A(f"s_memrealtime s[{92+2*i}:{93+2*i}]")
def dump_stamps(A, opts, kidx):
    if not opts.get('prof'): return
    A("s_waitcnt vmcnt(0) lgkmcnt(0)")
    A("s_memrealtime s[4:5]")
    A("s_waitcnt lgkmcnt(0)")
    A(f"s_mov_b32 s8, s{P_WS}")
    A(f"s_mov_b32 s9, s{P_WS+1}")
    A(f"s_mov_b32 s10, {80*MB}")
    A("s_mov_b32 s11, 0x00020000")
    A("s_lshl_b32 s6, s2, 2")
    A("s_add_u32 s6, s6, s3")
    A("s_lshl_b32 s6, s6, 5")
    A(f"s_add_u32 s6, s6, {PROF_OFF + kidx*32768}")
    for i in range(5): A(f"v_mov_b32 v{2+i}, s{92+2*i}")
    A("v_mov_b32 v7, s4")
    A("s_getreg_b32 s7, hwreg(HW_REG_XCC_ID)")
    A("v_mov_b32 v8, s7")
    A("s_sub_u32 s7, s78, s76")
    A("v_mov_b32 v9, s7")
    A("v_mov_b32 v10, 0")
    A("buffer_store_dwordx4 v[2:5], v10, s[8:11], s6 offen")
    A("buffer_store_dwordx4 v[6:9], v10, s[8:11], s6 offen offset:16")

def cyc(A, opts, i):
    if opts.get('prof'):
        A(f"s_memtime s[{76+2*i}:{77+2*i}]")

def lstamp(A, opts, i, vreg):
    if not opts.get('lprof'): return
    if i > 0: A(f"v_writelane_b32 v{vreg}, s{100 if (i-1)%2 else 98}, {i-1}")
    A(f"s_memrealtime s[{100 if i%2 else 98}:{101 if i%2 else 99}]")
def ldump(A, opts, n, vreg):
    if not opts.get('lprof'): return
    A("s_waitcnt vmcnt(0) lgkmcnt(0)")
    A(f"v_writelane_b32 v{vreg}, s{100 if (n-1)%2 else 98}, {n-1}")
    A(f"s_mov_b32 s8, s{P_WS}")
    A(f"s_mov_b32 s9, s{P_WS+1}")
    A(f"s_mov_b32 s10, {80*MB}")
    A("s_mov_b32 s11, 0x00020000")
    A("s_lshl_b32 s6, s2, 2")
    A("s_add_u32 s6, s6, s3")
    A("s_lshl_b32 s6, s6, 8")
    A(f"s_add_u32 s6, s6, {PROF_OFF + MB}")
    A("v_lshlrev_b32 v2, 2, v0")
    A(f"buffer_store_dword v{vreg}, v2, s[8:11], s6 offen")
```

```python
import sys, json
from common import *
import importlib
NAME = "gated_mix__ssm_conv_h3__compressed_kv_cla__prompt"
HDR = open("cdna_kernels/%s.s.ref" % NAME).read().split("; Override launch geometry")[0]
def build(opts, which=(1,2,3)):
    ks = []
    import common
    if opts.get('codepf', 1): common.CODEPF.update({'1': 'K3_END' if 3 in which else 'K1_END', '2': 'K2_END', '3': 'K3_END'})
    import common; common.SCRAMBLE.update(opts.get('scramble', ''))
    bad = 0
    if 1 in which:
        import k1; A = k1.gen_k1(opts); bad += check(A.L, "k1"); ks.append(("gm_proj_kernel", A, 512, 256, 163840))
    if 2 in which:
        import k2; A, extra = k2.gen_k2(opts); bad += check(A.L, "k2") + check(A.cold, "k2cold") + sum(check(e, "k2x") for e in extra); ks.append(("gm_attn_kernel", A, 512, 256, 163840))
    if 3 in which:
        import k3; A, extra = k3.gen_k3(opts); bad += check(A.L, "k3") + sum(check(e, "k3x") for e in extra); ks.append(("gm_out_kernel", A, 512, 256, 163840))
    assert bad == 0, "hazards"
    s = HDR
    for n, A, nv, acc, lds in ks:
        s += f"; @launch kernel={n} grid=(256,1,1) block=(256,1,1) lds={lds}\n"
    s += '.amdgcn_target "amdgcn-amd-amdhsa--gfx950"\n'
    for n, A, nv, acc, lds in ks:
        s += kernel_wrap(n, A.text(), nv, acc)
    for n, A, nv, acc, lds in ks:
        if getattr(A, 'cold', None): s += ".text\n" + "\n".join(A.cold) + "\n"
    return s
if __name__ == "__main__":
    out = sys.argv[1]
    which = tuple(int(c) for c in sys.argv[2]) if len(sys.argv) > 2 else (1,2,3)
    opts = json.loads(sys.argv[3]) if len(sys.argv) > 3 else {}
    open(out, "w").write(build(opts, which))
    print("wrote", out)
```

```python
import re

def v(i, n=1): return f"v{i}" if n == 1 else f"v[{i}:{i+n-1}]"
def a(i, n=1): return f"a{i}" if n == 1 else f"a[{i}:{i+n-1}]"
def s(i, n=1): return f"s{i}" if n == 1 else f"s[{i}:{i+n-1}]"

class R:
    def __init__(self, f, i): self.f, self.i = f, i
    def __call__(self, off=0, n=1):
        return (v if self.f == 'v' else a)(self.i + off, n)

_reg = re.compile(r'^(-|abs\()?([vas])(?:(\d+)|\[(\d+):(\d+)\])\)?$')
def regs(tok):
    tok = tok.strip()
    if tok in ('vcc',): return {('s', 'vcc')}
    if tok == 'm0': return {('s', 'm0')}
    if tok == 'exec': return {('s', 'exec')}
    m = _reg.match(tok)
    if not m: return set()
    f = m.group(2)
    if m.group(3) is not None: return {(f, int(m.group(3)))}
    return {(f, i) for i in range(int(m.group(4)), int(m.group(5)) + 1)}

TRANS = ('v_exp_f32', 'v_log_f32', 'v_rcp_f32', 'v_rsq_f32', 'v_sqrt_f32')

class Ins:
    def __init__(self, text):
        self.text = text
        t = text.split(';')[0].strip()
        self.label = t.endswith(':') or t.startswith('.') or t == ''
        self.w = set(); self.r = set(); self.kind = None; self.states = 1
        self.srcC = set(); self.ab = set(); self.dpp = False; self.stdata = set(); self.wide = False
        if self.label: self.states = 0; return
        parts = t.split(None, 1)
        mn = parts[0]; self.mn = mn
        ops = []
        if len(parts) > 1:
            ops = [o.strip() for o in parts[1].split(',')]
            ops2 = []
            for o in ops:
                ops2.append(o.split()[0] if o else o)
            mods = parts[1]
            ops = ops2
        else: mods = ''
        R_ = [regs(o) for o in ops]
        if mn == 's_nop': self.states = int(ops[0], 0) + 1; self.kind = 'salu'; return
        if mn.startswith('v_mfma'):
            self.kind = 'mfma'; self.w = R_[0]; self.ab = R_[1] | R_[2]; self.srcC = R_[3]
            self.r = self.ab | self.srcC
            self.passes = 4 if '16x16x32' in mn else 8
        elif mn.startswith('v_'):
            self.kind = 'valu'
            self.dpp = '_dpp' in mn or 'row_' in mods or 'quad_perm' in mods
            if 'permlane' in mn:
                self.w = R_[0] | R_[1]; self.r = R_[0] | R_[1]
            else:
                self.w = set(R_[0]); self.r = set().union(*R_[1:]) if len(R_) > 1 else set()
                if mn.startswith('v_fmac') or mn.startswith('v_dot2c') or self.dpp: self.r |= R_[0]
                if '_co_' in mn: self.w |= R_[1]
        elif mn.startswith('ds_read'):
            self.kind = 'ds'; self.w = R_[0]; self.r = R_[1]
        elif mn.startswith('ds_write'):
            self.kind = 'ds'; self.r = set().union(*R_)
        elif mn.startswith('buffer_load'):
            self.kind = 'vmem'
            if re.search(r'\blds\b', mods):
                self.r = set().union(*R_) | {('s', 'm0')}; self.dma = True
            else:
                self.w = R_[0]; self.r = set().union(*R_[1:])
        elif mn.startswith('buffer_inv'):
            self.kind = 'vmem'
        elif mn.startswith('buffer_atomic'):
            self.kind = 'vmem'; self.r = set().union(*R_)
        elif mn.startswith('buffer_store'):
            self.kind = 'vmem'; self.r = set().union(*R_); self.stdata = R_[0]
            self.wide = 'x4' in mn or 'x3' in mn
        elif mn.startswith('s_'):
            self.kind = 'salu'
            if mn.startswith('s_cmp') or mn.startswith('s_cbranch') or mn in ('s_waitcnt', 's_barrier', 's_branch', 's_endpgm', 's_setprio', 's_sleep'):
                self.r = set().union(*R_) if R_ else set()
                if 'vcc' in mn: self.r |= {('s', 'vcc')}
            else:
                self.w = R_[0]; self.r = set().union(*R_[1:]) if len(R_) > 1 else set()
                if 'saveexec' in mn: self.w |= {('s', 'exec')}
        else:
            raise ValueError("unknown instr " + text)

def need(p, c):
    n = 0
    vec = lambda S: {x for x in S if x[0] in 'va'}
    sc = lambda S: {x for x in S if x[0] == 's'}
    if p.kind == 'valu':
        if c.kind == 'mfma' and vec(p.w) & c.r: n = max(n, 2)
        if c.kind == 'valu':
            if p.mn in TRANS and c.mn not in TRANS and vec(p.w) & c.r: n = max(n, 1)
            if (c.dpp or 'permlane' in c.mn) and vec(p.w) & c.r: n = max(n, 2)
            if c.mn.startswith('v_readfirstlane') or c.mn.startswith('v_readlane'):
                if vec(p.w) & c.r: n = max(n, 1)
            if sc(p.w) & c.r: n = max(n, 2)
        if c.kind == 'vmem' and sc(p.w) & c.r: n = max(n, 5)
        if c.kind == 'mfma' and ('s', 'exec') in p.w: n = max(n, 4)
    if p.kind == 'salu':
        if ('s', 'm0') in p.w and c.kind == 'vmem' and ('s', 'm0') in c.r: n = max(n, 1)
    if p.kind == 'mfma':
        big = {4: 8, 8: 12}[p.passes]
        if c.kind == 'mfma':
            if p.w & c.ab: n = max(n, big)
            if p.w & c.srcC and not (p.w == c.srcC and p.passes == c.passes): n = max(n, {4: 6, 8: 10}[p.passes])
            if p.w & c.w and not (p.w == c.srcC) : n = max(n, 0)
        elif c.kind in ('valu', 'vmem', 'ds'):
            if p.w & (c.r | c.w): n = max(n, big)
            if c.kind == 'valu' and p.srcC & c.w: n = max(n, {4: 3, 8: 7}[p.passes])
    if p.kind == 'vmem' and p.wide and p.stdata & c.w:
        n = max(n, 2 if c.kind in ('valu', 'mfma') else 1)
    return n

def check(lines, name=""):
    ins = [Ins(l) for l in lines]
    ins = [i for i in ins if not i.label]
    bad = 0
    for ci, c in enumerate(ins):
        d = 0
        for pi in range(ci - 1, max(ci - 14, -1), -1):
            p = ins[pi]
            n = need(p, c)
            if n > d:
                print(f"HAZARD[{name}] need {n} have {d}:\n   {p.text.strip()}\n   {c.text.strip()}")
                bad += 1
            d += p.states
            if d >= 13: break
    return bad

class Asm:
    def __init__(self):
        self.L = []
        self.vm = 0
        self.vm_done = 0
        self.lg = 0
        self.lg_done = 0
    def __call__(self, t):
        for l in t.strip('\n').split('\n'):
            l = l.strip()
            if not l: continue
            self.L.append(l if l.endswith(':') or l.startswith('.') else "    " + l)
    def vmem(self, t):
        self(t); self.vm += 1; return self.vm - 1
    def ds(self, t):
        self(t); self.lg += 1; return self.lg - 1
    def wait(self, vm=None, lg=None):
        parts = []
        if vm is not None and vm >= self.vm_done:
            n = self.vm - 1 - vm
            n = min(n, 63)
            parts.append(f"vmcnt({n})"); self.vm_done = self.vm - n
        if lg is not None and lg >= self.lg_done:
            n = self.lg - 1 - lg
            n = min(n, 15)
            parts.append(f"lgkmcnt({n})"); self.lg_done = self.lg - n
        if parts: self("s_waitcnt " + " ".join(parts))
    def text(self): return "\n".join(self.L) + "\n"

def srd(A, d, base, size):
    A(f"s_mov_b32 s{d}, s{base}")
    A(f"s_mov_b32 s{d+1}, s{base+1}")
    A(f"s_mov_b32 s{d+2}, {size}")
    A(f"s_mov_b32 s{d+3}, 0x00020000")

def kernel_wrap(name, body, nv, acc, ns=102):
    return f""".text
.globl {name}
.p2align 8
.type {name},@function
{name}:
{body}
.section .rodata,"a"
.p2align 6
.amdhsa_kernel {name}
  .amdhsa_next_free_vgpr {nv}
  .amdhsa_next_free_sgpr {ns}
  .amdhsa_accum_offset {acc}
  .amdhsa_group_segment_fixed_size 0
  .amdhsa_kernarg_size 128
  .amdhsa_user_sgpr_count 2
  .amdhsa_user_sgpr_kernarg_segment_ptr 1
  .amdhsa_system_sgpr_workgroup_id_x 1
.end_amdhsa_kernel
"""
```

```python
from asmlib import *
MB = 1 << 20
Q_OFF, K_OFF, V_OFF, CTX_OFF, U_OFF, Z_OFF, G_OFF = 0, 16*MB, 32*MB, 48*MB, 64*MB, 66*MB, 68*MB
WS_USED = 68*MB + 32768 + 8192
P_X, P_K, P_V, P_SHIFT, P_SSMK, P_SSMD, P_BX, P_C, P_WQ, P_WUK, P_WUV, P_WO, P_GATE, P_OUT, P_DBG, P_WS = [16+2*i for i in range(16)]
MF = "v_mfma_f32_16x16x32_bf16"
import struct
def f2u(x): return struct.unpack('<I', struct.pack('<f', x))[0]
def hexf(x): return "0x%08x" % f2u(x)

SCRAMBLE = set()
CODEPF = {}
def prologue(A, end_label):
    A(f"s_cmp_ge_u32 s2, 256")
    A(f"s_cbranch_scc1 {end_label}")
    if end_label[1] in SCRAMBLE:
        A("s_mul_i32 s2, s2, 37")
        A("s_lshr_b32 s3, s2, 5")
        A("s_and_b32 s3, s3, 7")
        A("s_xor_b32 s2, s2, s3")
        A("s_and_b32 s2, s2, 255")
    A("s_load_dwordx16 s[16:31], s[0:1], 0")
    A("s_load_dwordx16 s[32:47], s[0:1], 64")
    A("v_lshrrev_b32 v1, 6, v0")
    A("v_and_b32 v0, 63, v0")
    A("v_readfirstlane_b32 s3, v1")
    A("v_lshlrev_b32 v1, 4, v0")
    if CODEPF.get(end_label[1]):
        k = end_label[1]
        A("s_getpc_b64 s[4:5]")
        A(f"K{k}_PC:")
        A(f"s_mov_b32 s6, {CODEPF[k]} - K{k}_PC")
        A("s_mov_b32 s7, 0x00020000")
        A("s_lshr_b32 s8, s2, 3")
        A("s_lshl_b32 s8, s8, 2")
        A("s_add_u32 s8, s8, s3")
        A("s_lshl_b32 s8, s8, 13")
        A("v_lshlrev_b32 v2, 7, v0")
        A.vmem("buffer_load_dword v255, v2, s[4:7], s8 offen")

PROF_OFF = 72*MB
def stamp(A, opts, i):
    if opts.get('prof'):
        A(f"s_memrealtime s[{92+2*i}:{93+2*i}]")
def dump_stamps(A, opts, kidx):
    if not opts.get('prof'): return
    A("s_waitcnt vmcnt(0) lgkmcnt(0)")
    A("s_memrealtime s[4:5]")
    A("s_waitcnt lgkmcnt(0)")
    A(f"s_mov_b32 s8, s{P_WS}")
    A(f"s_mov_b32 s9, s{P_WS+1}")
    A(f"s_mov_b32 s10, {80*MB}")
    A("s_mov_b32 s11, 0x00020000")
    A("s_lshl_b32 s6, s2, 2")
    A("s_add_u32 s6, s6, s3")
    A("s_lshl_b32 s6, s6, 5")
    A(f"s_add_u32 s6, s6, {PROF_OFF + kidx*32768}")
    for i in range(5): A(f"v_mov_b32 v{2+i}, s{92+2*i}")
    A("v_mov_b32 v7, s4")
    A("s_getreg_b32 s7, hwreg(HW_REG_XCC_ID)")
    A("v_mov_b32 v8, s7")
    A("s_sub_u32 s7, s78, s76")
    A("v_mov_b32 v9, s7")
    A("v_mov_b32 v10, 0")
    A("buffer_store_dwordx4 v[2:5], v10, s[8:11], s6 offen")
    A("buffer_store_dwordx4 v[6:9], v10, s[8:11], s6 offen offset:16")

def cyc(A, opts, i):
    if opts.get('prof'):
        A(f"s_memtime s[{76+2*i}:{77+2*i}]")

def lstamp(A, opts, i, vreg):
    if not opts.get('lprof'): return
    if i > 0: A(f"v_writelane_b32 v{vreg}, s{100 if (i-1)%2 else 98}, {i-1}")
    A(f"s_memrealtime s[{100 if i%2 else 98}:{101 if i%2 else 99}]")
def ldump(A, opts, n, vreg):
    if not opts.get('lprof'): return
    A("s_waitcnt vmcnt(0) lgkmcnt(0)")
    A(f"v_writelane_b32 v{vreg}, s{100 if (n-1)%2 else 98}, {n-1}")
    A(f"s_mov_b32 s8, s{P_WS}")
    A(f"s_mov_b32 s9, s{P_WS+1}")
    A(f"s_mov_b32 s10, {80*MB}")
    A("s_mov_b32 s11, 0x00020000")
    A("s_lshl_b32 s6, s2, 2")
    A("s_add_u32 s6, s6, s3")
    A("s_lshl_b32 s6, s6, 8")
    A(f"s_add_u32 s6, s6, {PROF_OFF + MB}")
    A("v_lshlrev_b32 v2, 2, v0")
    A(f"buffer_store_dword v{vreg}, v2, s[8:11], s6 offen")

SDBG = 40
class Deferred:
    def __init__(self, A): self.A = A; self.q = []
    def __call__(self, t):
        for l in t.strip().split('\n'):
            if l.strip(): self.q.append(lambda l=l: self.A(l))
    def call(self, f): self.q.append(f)
F_OFF = G_OFF + 32768
def one_lane(A, text):
    A("s_mov_b64 exec, 1")
    r = A.vmem(text)
    A("s_mov_b64 exec, -1")
    return r
VW = 3 if False else None
def flag_store(A, vw, vtmp, val, srd_, soff, phase):
    A(f"v_mov_b32 v{vtmp}, {val}")
    return one_lane(A, f"buffer_store_dword v{vtmp}, v{vw}, s[{srd_}:{srd_+3}], s{soff} offen offset:{phase*512} sc1")
_pl = [0]
def poll_check(A, cold, load_text, vdst, expect, stmp, smask):
    _pl[0] += 1; n = _pl[0]
    A(f"v_cmp_ne_u32 vcc, {expect}, v{vdst}")
    A(f"s_and_b64 vcc, vcc, s[{smask}:{smask+1}]")
    A(f"s_cbranch_scc1 GM_POLL{n}")
    A(f"GM_PB{n}:")
    B = Asm()
    B(f"GM_POLL{n}:")
    B(f"s_mov_b32 s{stmp}, 0x40000")
    B(f"GM_PL{n}:")
    B(load_text)
    B("s_waitcnt vmcnt(0)")
    B(f"v_cmp_ne_u32 vcc, {expect}, v{vdst}")
    B(f"s_cbranch_vccz GM_PB{n}")
    B("s_sleep 4")
    B(f"s_sub_u32 s{stmp}, s{stmp}, 1")
    B(f"s_cmp_lg_u32 s{stmp}, 0")
    B(f"s_cbranch_scc1 GM_PL{n}")
    B(f"s_branch GM_PB{n}")
    cold.append(B)
```

```python
from common import *
import math
QSCALE = math.log2(math.e) / math.sqrt(128.0)
NS = 6
AST = 98304

def dma_a_voff(A, d):
    A(f"""
    v_lshrrev_b32 v30, 2, v0
    v_lshlrev_b32 v30, 10, v30
    v_lshrrev_b32 v31, 4, v0
    v_sub_u32 v32, 0, v31
    v_xor_b32 v32, v32, v0
    v_and_b32 v32, 3, v32
    v_lshl_add_u32 v{d}, v32, 4, v30
    """)
def dma_b_voff(A, d):
    A(f"""
    v_lshrrev_b32 v30, 3, v0
    v_lshlrev_b32 v30, 13, v30
    v_and_b32 v33, 1, v0
    v_lshl_add_u32 v30, v33, 4, v30
    v_bfe_u32 v33, v0, 1, 2
    v_and_b32 v34, 1, v31
    v_xor_b32 v33, v33, v34
    v_lshl_add_u32 v{d}, v33, 5, v30
    v_xor_b32 v33, 2, v33
    v_lshl_add_u32 v{d+1}, v33, 5, v30
    v_add_u32 v{d+1}, 64512, v{d+1}
    v_add_u32 v{d+2}, 129024, v{d}
    v_add_u32 v{d+3}, 129024, v{d+1}
    """)
def rd_a_addr(A, d, sbase):
    A(f"""
    v_bfe_u32 v30, v0, 2, 2
    v_sub_u32 v32, 0, v30
    v_xor_b32 v32, v32, v31
    v_and_b32 v32, 3, v32
    v_and_b32 v33, 15, v0
    v_lshl_add_u32 v32, v33, 2, v32
    v_lshlrev_b32 v32, 4, v32
    v_add_u32 v{d}, {sbase}, v32
    """)
def rd_b_addr(A, d, base):
    A(f"""
    v_lshl_add_u32 v32, v31, 3, v30
    v_lshlrev_b32 v32, 7, v32
    v_and_b32 v33, 3, v0
    v_lshl_add_u32 v32, v33, 3, v32
    v_bfe_u32 v33, v0, 3, 2
    """)
    if base: A(f"v_add_u32 v32, {base}, v32")
    for ct in range(4):
        A(f"v_xor_b32 v34, {ct}, v33")
        A(f"v_lshl_add_u32 v{d+ct}, v34, 5, v32")

def gen_k1(opts={}, nxt=None):
    MG = nxt is not None
    stf = opts.get('k1_store', 'sc1')
    wfl = opts.get('k1_wfl', '')
    pfl = opts.get('k1_pfl', 'nt')
    LP = opts.get('lprof') == 1
    A = Asm()
    prologue(A, "K3_END" if MG else "K1_END")
    stamp(A, opts, 0)
    if LP: lstamp(A, opts, 0, 25)
    SA, SUK, SUV, SWS, SK, SV, SM, SG, SX, SWQ = 60, 52, 56, 48, 64, 68, 72, 80, 84, 88
    vA, vB, vRA, vRB = 2, 6, 10, 11
    A(f"""
    v_lshrrev_b32 v31, 4, v0
    v_lshrrev_b32 v30, 3, v0
    v_lshlrev_b32 v30, 10, v30
    v_and_b32 v32, 7, v0
    v_xor_b32 v32, v32, v31
    v_lshl_add_u32 v{vA}, v32, 4, v30
    v_xor_b32 v32, 4, v32
    v_lshl_add_u32 v{vA+1}, v32, 4, v30
    v_add_u32 v{vA+1}, 7168, v{vA+1}
    v_add_u32 v{vA+2}, 14336, v{vA}
    v_add_u32 v{vA+3}, 14336, v{vA+1}
    """)
    dma_b_voff(A, vB)
    mp = opts.get('k1_map', 4)
    lg = {1: 0, 2: 1, 4: 2, 8: 3}[mp]
    A(f"""
    s_and_b32 s4, s2, {8//mp-1}
    s_lshl_b32 s4, s4, {lg}
    s_lshr_b32 s5, s2, 3
    s_and_b32 s6, s5, {mp-1}
    s_add_u32 s6, s6, s4
    s_and_b32 s7, s2, 7
    s_lshr_b32 s7, s7, {3-lg}
    s_lshl_b32 s7, s7, {5-lg}
    s_lshr_b32 s8, s5, {lg}
    s_add_u32 s7, s7, s8
    s_lshl_b32 s8, s6, 18
    s_lshl_b32 s9, s3, 16
    s_add_u32 s8, s8, s9
    s_lshl_b32 s9, s7, 8
    s_lshl_b32 s10, s3, 18
    s_add_u32 s9, s9, s10
    s_lshl_b32 s11, s3, 12
    s_lshl_b32 s12, s3, 14
    s_add_u32 s12, s12, {AST}
    """)
    A(f"v_lshlrev_b32 v26, {min(5+lg,7)}, v0")
    A(f"v_lshrrev_b32 v29, {lg-1}, v0")
    A(f"v_lshlrev_b32 v29, 13, v29")
    A("s_waitcnt lgkmcnt(0)")
    if LP and opts.get('lp_start'): lstamp(A, opts, 1, 25)
    srd(A, SUK, P_WUK, 4*MB)
    srd(A, SA, P_C, 2*MB)
    dA, dB = {}, {}
    def dmaA(q):
        u, hf = divmod(q, 2)
        ops = [lambda: (A(f"s_add_u32 m0, s12, {(q%4)*4096}"), A(f"s_add_u32 s88, s8, {u*128+hf*32768}"))]
        for j in range(4):
            ops.append(lambda j=j: dA.__setitem__(q, A.vmem(f"buffer_load_dwordx4 v{vA+j}, s[{SA}:{SA+3}], s88 offen offset:{j*1024} lds")))
        return ops
    def dmaB(c):
        sub, kc = divmod(c, 4)
        S = SUK if sub < 2 else SUV
        ops = [lambda: (A(f"s_add_u32 m0, s11, {(c%NS)*16384}"), A(f"s_add_u32 s89, s9, {kc*128*8192+(sub&1)*128}"))]
        for j in range(4):
            ops.append(lambda j=j: dB.__setitem__(c, A.vmem(f"buffer_load_dwordx4 v{vB+j}, s[{S}:{S+3}], s89 offen offset:{j*1024} {wfl} lds")))
        return ops
    tfl = opts.get('k1_tfl', '')
    A(f"""
    s_lshl_b32 s13, s5, 2
    s_add_u32 s13, s13, s3
    s_lshl_b32 s13, s13, {11+lg}
    s_lshl_b32 s14, s4, 18
    s_add_u32 s13, s13, s14
    s_and_b32 s14, s5, {mp-1}
    s_lshl_b32 s14, s14, 2
    s_add_u32 s14, s14, s3
    s_lshl_b32 s14, s14, {13+7-lg}
    s_lshl_b32 s15, s7, 8
    s_add_u32 s15, s15, s14
    """)
    def touchB(sub):
        S = SUK if sub < 2 else SUV
        return lambda: A.vmem(f"buffer_load_dword v83, v29, s[{S}:{S+3}], s15 offen offset:{(sub&1)*128} {tfl}")
    def touchC():
        A.vmem(f"buffer_load_dword v83, v26, s[{SA}:{SA+3}], s13 offen")
        if mp == 8:
            A("s_add_u32 s13, s13, 8192")
            A.vmem(f"buffer_load_dword v83, v26, s[{SA}:{SA+3}], s13 offen")
    order = opts.get('k1_order', 'a0 a1 b0 a2 a3 tc tb0')
    for o in order.split():
        if o[0] == 'a': [f() for f in dmaA(int(o[1]))]
        elif o[0] == 'b': [f() for f in dmaB(int(o[1]))]
        elif o == 'tc': touchC()
        else: touchB(int(o[2]))()
        if o == 'b0': srd(A, SUV, P_WUV, 4*MB)
    A(f"""
    v_and_b32 v33, 15, v0
    v_lshlrev_b32 v32, 7, v33
    v_add_u32 v32, s12, v32
    v_lshrrev_b32 v33, 1, v33
    v_xor_b32 v33, v33, v31
    v_lshl_add_u32 v{vRA}, v33, 4, v32
    v_xor_b32 v33, 4, v33
    v_lshl_add_u32 v55, v33, 4, v32
    v_bfe_u32 v30, v0, 2, 2
    """)
    rd_b_addr(A, vRB, 0)
    for ct in range(4): A(f"v_add_u32 v{vRB+4+ct}, 0x10000, v{vRB+ct}")
    srd(A, SWS, P_WS, WS_USED)
    A(f"""
    s_lshl_b32 s0, s7, 19
    s_lshl_b32 s14, s6, 16
    s_add_u32 s0, s0, s14
    s_lshl_b32 s14, s3, 14
    s_add_u32 s0, s0, s14
    s_mov_b32 s90, {hexf(QSCALE)}
    """)

    def stream():
        q = []
        class D:
            def __call__(self, t):
                for l in t.strip().split('\n'):
                    if l.strip(): q.append(lambda l=l: A(l))
            def vmem(self, t, tag=None):
                q.append(lambda: ids.__setitem__(tag, A.vmem(t)))
            def wait(self, tag): q.append(lambda: A.wait(vm=ids[tag]))
            def ds(self, t, tag=None): q.append(lambda: ids.__setitem__(tag, A.ds(t)))
            def waitlg(self, tag): q.append(lambda: A.wait(lg=ids[tag]))
        return q, D()
    ids = {}
    pl, D = stream()
    srd(D, SK, P_K, 2*MB); srd(D, SV, P_V, 2*MB); srd(D, SM, P_SHIFT, 4096); srd(D, SG, P_GATE, 1024); srd(D, SX, P_X, 2*MB)
    kr, vr, wsh, pa = 36, 47, 56, 19
    gx, gw = 60, 68
    D(f"""
    s_lshr_b32 s29, s2, 3
    s_lshl_b32 s29, s29, 6
    s_lshl_b32 s10, s3, 4
    s_add_u32 s29, s29, s10
    v_lshrrev_b32 v30, 5, v0
    v_and_b32 v31, 31, v0
    v_lshlrev_b32 v32, 3, v30
    v_add_u32 v32, s29, v32
    s_and_b32 s10, s2, 7
    s_lshl_b32 s13, s10, 7
    v_lshlrev_b32 v33, 10, v32
    v_lshl_add_u32 v33, v31, 2, v33
    v_add_u32 v{pa+1}, s13, v33
    v_subrev_u32 v{pa}, 3072, v{pa+1}
    v_add_u32 v{pa+2}, 4096, v{pa+1}
    s_lshl_b32 s13, s10, 9
    v_lshlrev_b32 v33, 4, v31
    v_add_u32 v{pa+3}, s13, v33
    s_lshl_b32 s13, s3, 5
    s_add_u32 s13, s13, {AST}
    v_lshlrev_b32 v33, 8, v31
    v_lshl_add_u32 v33, v30, 4, v33
    v_add_u32 v{pa+4}, s13, v33
    s_lshl_b32 s13, s10, 18
    s_lshl_b32 s14, s3, 16
    s_add_u32 s13, s13, s14
    s_lshr_b32 s14, s2, 3
    s_lshl_b32 s14, s14, 7
    s_add_u32 s13, s13, s14
    s_add_u32 s13, s13, {U_OFF}
    v_lshrrev_b32 v33, 3, v0
    v_lshlrev_b32 v33, 12, v33
    v_and_b32 v34, 7, v0
    v_lshl_add_u32 v33, v34, 4, v33
    v_add_u32 v{pa+5}, s13, v33
    s_lshl_b32 s13, s2, 3
    s_lshl_b32 s14, s3, 1
    s_add_u32 s13, s13, s14
    v_add_u32 v32, s13, v30
    v_lshlrev_b32 v26, 5, v31
    v_lshl_add_u32 v27, v32, 10, v26
    v_and_b32 v32, 7, v32
    v_lshlrev_b32 v32, 2, v32
    v_add_u32 v32, {AST+8192}, v32
    v_cmp_eq_u32 vcc, 31, v31
    v_mov_b32 v33, {AST+8192+64}
    s_nop 0
    v_cndmask_b32 v28, v33, v32, vcc
    """)
    D.vmem(f"buffer_load_dwordx4 {v(gx,4)}, v27, s[{SX}:{SX+3}], 0 offen")
    D.vmem(f"buffer_load_dwordx4 {v(gx+4,4)}, v27, s[{SX}:{SX+3}], 0 offen offset:16")
    D.vmem(f"buffer_load_dwordx4 {v(gw,4)}, v26, s[{SG}:{SG+3}], 0 offen")
    D.vmem(f"buffer_load_dwordx4 {v(gw+4,4)}, v26, s[{SG}:{SG+3}], 0 offen offset:16")
    D.vmem(f"buffer_load_dwordx4 {v(wsh,4)}, v{pa+3}, s[{SM}:{SM+3}], 0 offen")
    for r in range(11):
        b, o = (pa, r) if r < 3 else ((pa+1, r-3) if r < 7 else (pa+2, r-7))
        D.vmem(f"buffer_load_dword v{kr+r}, v{b}, s[{SK}:{SK+3}], 0 offen offset:{o*1024} {pfl}")
    for r in range(8):
        b, o = (pa+1, r) if r < 4 else (pa+2, r-4)
        D.vmem(f"buffer_load_dword v{vr+r}, v{b}, s[{SV}:{SV+3}], 0 offen offset:{o*1024} {pfl}", 'prep')
    gap = opts.get('k1_plgap', 0)
    pl = pl[:-24] + [f for g in pl[-24:] for f in [g] + [lambda: None]*gap]
    prep, P = stream()
    P.wait('prep')
    ga = 30
    P(f"v_mov_b32 v{ga}, 0")
    for i in range(8): P(f"v_dot2c_f32_bf16 v{ga}, v{gx+i}, v{gw+i}")
    P("s_nop 3")
    for sh in (1, 2, 4, 8):
        P(f"v_add_f32_dpp v{ga}, v{ga}, v{ga} row_shr:{sh} row_mask:0xf bank_mask:0xf bound_ctrl:0")
        P("s_nop 1")
    P(f"""
    v_add_f32_dpp v{ga}, v{ga}, v{ga} row_bcast:15 row_mask:0xa bank_mask:0xf
    v_cvt_pk_bf16_f32 v{ga}, v{ga}, v{ga}
    v_lshlrev_b32 v{ga}, 16, v{ga}
    v_mul_f32 v{ga}, {hexf(-math.log2(math.e))}, v{ga}
    v_exp_f32 v{ga}, v{ga}
    s_nop 0
    v_add_f32 v{ga}, 1.0, v{ga}
    v_rcp_f32 v{ga}, v{ga}
    s_nop 0
    v_cvt_pk_bf16_f32 v{ga}, v{ga}, v{ga}
    v_lshlrev_b32 v{ga}, 16, v{ga}
    """)
    P.ds(f"ds_write_b32 v28, v{ga}")
    kf, wf, uo, pk = 60, 71, 75, 32
    def unp(d, src, ch):
        return f"v_lshlrev_b32 v{d}, 16, v{src}" if ch == 0 else f"v_and_b32 v{d}, 0xffff0000, v{src}"
    for ch in range(2):
        for r in range(11): P(unp(kf+r, kr+r, ch))
        for i in range(4): P(unp(wf+i, wsh+2*ch+i//2, i % 2))
        for t in range(4):
            for r in range(8):
                if t == 0: P(f"v_mul_f32 v{uo+r}, v{kf+r}, v{wf+3}")
                else: P(f"v_fmac_f32 v{uo+r}, v{kf+r+t}, v{wf+3-t}")
        for r in range(8): P(unp(kf+r, vr+r, ch))
        for r in range(8): P(f"v_mul_f32 v{uo+r}, v{uo+r}, v{kf+r}")
        for j in range(4): P(f"v_cvt_pk_bf16_f32 v{pk+j}, v{uo+7-2*j}, v{uo+6-2*j}")
        P.ds(f"ds_write_b128 v{pa+4}, {v(pk,4)} offset:{ch*128}", 'uw')
    P.waitlg('uw')
    prep.append(lambda: prep_done.append(curk[0]))
    prep_done = []
    pst, P2 = stream()
    P2(f"""
    s_lshl_b32 s29, s3, 11
    s_add_u32 s29, s29, {AST}
    v_add_u32 v30, s29, v1
    v_lshlrev_b32 v31, 2, v0
    v_add_u32 v32, {AST+8192}, v31
    """)
    P2.ds(f"ds_read_b128 v[60:63], v30")
    P2.ds(f"ds_read_b128 v[64:67], v30 offset:1024")
    P2.ds(f"ds_read_b32 v68, v32", 'ur')
    P2(f"""
    v_add_u32 v30, 32768, v{pa+5}
    s_lshl_b32 s29, s2, 7
    s_add_u32 s29, s29, {G_OFF}
    s_lshl_b32 s10, s3, 30
    s_add_u32 s29, s29, s10
    v_and_b32 v31, 127, v31
    """)
    P2.waitlg('ur')
    P2.vmem(f"buffer_store_dwordx4 v[60:63], v{pa+5}, s[{SWS}:{SWS+3}], 0 offen {stf}")
    P2.vmem(f"buffer_store_dwordx4 v[64:67], v30, s[{SWS}:{SWS+3}], 0 offen {stf}")
    P2("s_mov_b32 exec_hi, 0")
    P2.vmem(f"buffer_store_dword v68, v31, s[{SWS}:{SWS+3}], s29 offen {stf}")
    P2("s_mov_b32 exec_hi, -1")
    g_ = pst[-3:]; pst[-3:] = [lambda: [f() for f in g_]]
    tch, T = stream()
    if opts.get('k1_touch2', 1):
        srd(T, SWQ, P_WQ, 4*MB)
        T(f"""
        s_lshl_b32 s29, s5, 2
        s_add_u32 s29, s29, s3
        s_lshl_b32 s10, s29, 14
        v_lshlrev_b32 v26, 6, v0
        v_lshrrev_b32 v27, 4, v0
        v_lshlrev_b32 v27, 13, v27
        v_and_b32 v31, 15, v0
        v_lshl_add_u32 v27, v31, 6, v27
        s_lshl_b32 s29, s29, 15
        s_and_b32 s14, s2, 7
        s_lshl_b32 s14, s14, 10
        s_add_u32 s29, s29, s14
        """)
        T.vmem(f"buffer_load_dword v83, v27, s[{SWQ}:{SWQ+3}], s29 offen")
    def touchX():
        A.vmem(f"buffer_load_dword v83, v26, s[{SX}:{SX+3}], s10 offen")
        A("s_add_u32 s10, s10, 4096")

    BF, ET = 96, 84
    def acc(sub, rt, ct): return 128 + (sub & 1)*64 + (rt*4+ct)*4
    cnt = [0]
    def epi(sub, sel=range(8)):
        q, E = stream()
        half = sub & 1
        for i in sel:
            t = (ET + (cnt[0] % 2)*4) if sub < 3 else ET + 8; cnt[0] += 1
            if sub == 3 and i in (3, 7): t = 36 + i//4*4
            if sub < 2:
                rt, p = divmod(i, 2)
                lo, hi = acc(sub, rt, 2*p), acc(sub, rt, 2*p+1)
                for r in list(range(lo, lo+4)) + list(range(hi, hi+4)): E(f"v_mul_f32 v{r}, s90, v{r}")
                so, imm = K_OFF + rt*4096, (2*half+p)*1024
            else:
                pp, ct = divmod(i, 4)
                lo, hi = acc(sub, 2*pp, ct), acc(sub, 2*pp+1, ct)
                so, imm = V_OFF + pp*8192 + half*4096, ct*1024
            E(f"v_cvt_pk_bf16_f32 v{t}, v{lo}, v{lo+1}")
            E(f"v_cvt_pk_bf16_f32 v{t+1}, v{lo+2}, v{lo+3}")
            E(f"v_cvt_pk_bf16_f32 v{t+2}, v{hi}, v{hi+1}")
            E(f"v_cvt_pk_bf16_f32 v{t+3}, v{hi+2}, v{hi+3}")
            sr = 1 if sub < 3 else 28
            E(f"s_add_u32 s{sr}, s0, {so}")
            E.vmem(f"buffer_store_dwordx4 {v(t,4)}, v1, s[{SWS}:{SWS+3}], s{sr} offen offset:{imm} {stf}")
        q.append(lambda: epi_done.__setitem__(sub, curk[0]))
        return q
    epi_done, curk = {}, [0]
    rA, rB = {}, {}
    def readsA(q):
        u, hf = divmod(q, 2)
        return [(lambda r=r, par=par: rA.__setitem__(q, A.ds(f"ds_read_b128 {a(((2*u+par)*4+2*hf+r)*4,4)}, v{55 if par else vRA} offset:{(q%4)*4096+r*2048}"))) for par in range(2) for r in range(2)]
    CTM = opts.get('k1_ctm', 1)
    def stepfr(k):
        if k >= 48 and CTM:
            ct, g = divmod(k-48, 4)
            return [(12+g, f, ct) for f in range(4)]
        return [(k//4, k % 4, ct) for ct in range(4)]
    def readsB(k):
        out = []
        for f, (c, ksl, ct) in enumerate(stepfr(k)):
            sl = c % NS
            for sec in range(2):
                out.append(lambda f=f, sl=sl, ksl=ksl, ct=ct, sec=sec: rB.__setitem__(k, A.ds(f"ds_read_b64_tr_b16 {v(BF+(k&1)*16+f*4+2*sec,2)}, v{vRB+4*(sl>>2)+ct} offset:{(sl&3)*16384+ksl*4096+sec*512}")))
        return out
    bsched = opts.get('k1_bsched', {1: 1, 2: 3, 3: 6, 4: 11, 5: 13, 6: 16, 7: 19, 8: 21, 9: 24, 10: 26, 11: 29, 12: 31, 13: 34, 14: 36, 15: 39})
    bsched = {int(c): k for c, k in bsched.items()}
    for c, k in bsched.items(): assert k >= 4*(c-NS)+3 and k < 4*c-1
    if LP and opts.get('lp_start'): lstamp(A, opts, 2, 25)
    A.wait(vm=max(dB[0], dA[1]))
    A("s_barrier")
    if not MG: stamp(A, opts, 1); cyc(A, opts, 0)
    if LP and opts.get('lp_start'): lstamp(A, opts, 3, 25)
    for f in readsA(0) + readsA(1) + readsB(0): f()
    NK = 64
    lo = []; ep = []; e3 = []
    apos = opts.get('k1_apos', 10)
    for k in range(NK):
        sub, ks = divmod(k, 16)
        curk[0] = k
        if ks == 0 and sub >= 2: assert sub-2 in epi_done, sub
        if k == 16 and not MG: stamp(A, opts, 2)
        lgw = rB[k]
        if sub == 0: lgw = max(lgw, rA[min(ks+1, 15)])
        newchunk = (k + 1) % 4 == 0 and k + 1 < NK and not (CTM and k > 47)
        A.wait(vm=dB[15 if (CTM and k == 47) else (k+1)//4] if newchunk else None, lg=lgw)
        if LP and not opts.get('lp_start') and k % 2 == 0: lstamp(A, opts, k//2+1, 25)
        if LP and opts.get('lp_start') and k < 29: lstamp(A, opts, k+4, 25)
        rq = readsB(k+1) if k + 1 < NK else []
        ra = readsA(k+2) if k + 2 < 16 else []
        dq = dmaA(k+5) if k + 5 < 16 else []
        if k == 0: dq = dmaA(4) + dq
        if opts.get('k1_touch', 1):
            for sub_, kk in opts.get('k1_tsched', {2: 11, 3: 12}).items():
                if kk == k: dq = dq + [touchB(int(sub_))]
        for c, kk in bsched.items():
            if kk == k: dq = dq + dmaB(c)
        if k == opts.get('k1_plk', 13): lo = lo + pl
        if k == opts.get('k1_prepk', 28): lo = lo + prep
        if k == opts.get('k1_tchk', 48): lo = lo + tch
        if MG and k == opts.get('k1_nxtk', 50): assert not lo; lo = lo + nxt(A)
        if ks == 1 and sub >= 1: ep = epi(sub-1); epn = len(ep); ep0 = opts.get('k1_ep0', 7) if sub == 1 else 1
        if opts.get('k1_touch2', 1) and k in opts.get('k1_xsched', ()): dq = dq + [touchX]
        ndq = len(dq)
        for i in range(16):
            f_, rt = divmod(i, 4)
            c_, ksl_, ct = stepfr(k)[f_]
            kk_ = (c_ % 4)*4 + ksl_
            d = v(acc(sub, rt, ct), 4)
            b = v(BF+(k&1)*16+f_*4, 4); ar = a((kk_*4+rt)*4, 4)
            cin = d if kk_ else "0"
            A(f"{MF} {d}, {b}, {ar}, {cin}" if sub < 2 else f"{MF} {d}, {ar}, {b}, {cin}")
            if i == 0 and newchunk:
                A("s_barrier")
                if prep_done and pst: lo = lo + pst; pst = []
            n = 0
            if rq and (ra or i % 2 == 0): rq.pop(0)(); n += 1
            elif ra and i >= apos:
                if len(ra) == 4: A.wait(vm=dA[k+2])
                ra.pop(0)(); n += 1
            if dq and ndq - len(dq) < (ndq*(i+1)+14)//15: dq.pop(0)(); n += 1
            if ep and ks >= ep0:
                want = epn * ((ks-ep0)*16 + i + 1) // ((15-ep0)*16)
                if epn - len(ep) < want: ep.pop(0)(); n += 1
            if CTM and k in (52, 56, 60) and i == 9: e3 = e3 + epi(3, [(k-52)//4, 4+(k-52)//4])
            if e3 and i % 4 == 1: e3.pop(0)(); n += 1
            while lo and n < 2: lo.pop(0)(); n += 1
        assert not rq and not dq and not ra, (k, len(rq), len(dq), len(ra))
    assert not ep and not pst
    assert not lo
    if not MG: stamp(A, opts, 3); cyc(A, opts, 1)
    else: stamp(A, opts, 1)
    assert not e3
    A.tail = epi(3, [3, 7] if CTM else range(8))
    if MG:
        if LP: lstamp(A, opts, 33, 25); A('v_mov_b32 v15, v25')
        return A
    A("s_nop 7")
    for f in A.tail: f()
    stamp(A, opts, 4)
    if LP: lstamp(A, opts, 33, 25); ldump(A, opts, 34, 25)
    dump_stamps(A, opts, 0)
    A("K1_END:")
    A("s_endpgm")
    return A
if __name__ == "__main__":
    A = gen_k1()
    print("hazards:", check(A.L, "k1"), "instrs", len(A.L))
```

```python
from common import *
from k1 import dma_a_voff, dma_b_voff, rd_a_addr, rd_b_addr
BIG = 2.0**60
THR = 2.0**20
LA = 4
vK, vV, XB, TMP = 2, 3, 4, 6
SC = 7
L0, S0, E0, P0, C0, CM, O0 = 16, 48, 112, 120, 152, 168, 192
ET = 176
HR = 192
aQ, aK, aV, aO, aONE = 0, 64, 96, 128, 240
SWS, SH = 48, 52
sK, sKend, sM, sV, sT, sTA, sTB, sC0, sTHR = 56, 57, 59, 60, 61, 62, 63, 68, 73
sW0, VW0 = 18, 10
def Lreg(par, n): return L0 + par*16 + n*4
def Sreg(par, T, n, j=0): return S0 + par*32 + (n*2+T)*4 + j
def Preg(par, n, d=0): return P0 + par*16 + n*4 + d
def Creg(n): return C0 + n*4
def Oacc(n): return n % 2 == 0
def Oidx(dt, n, j=0): return (aO if Oacc(n) else O0) + (n//2)*32 + dt*4 + j
def Oop(dt, n): return (a if Oacc(n) else v)(Oidx(dt, n), 4)
def elems(ns): return [(T, n, j) for n in ns for T in range(2) for j in range(4)]
UB = 131072
RED = 73728

def xlane(A, op, r, t):
    for sw in ("v_permlane16_swap_b32", "v_permlane32_swap_b32"):
        A(f"v_mov_b32 v{t}, v{r}")
        A("s_nop 1")
        A(f"{sw} v{r}, v{t}")
        A(f"{op} v{r}, v{r}, v{t}")

def gen_k2(opts={}):
    stf = opts.get('k2_store', 'sc1')
    MG = opts.get('merged')
    hfl = opts.get('k2_hfl', 'sc1') if MG else ''
    slow = []
    LP = opts.get('lprof') == 2
    SX, SWQ, SD = 84, 88, 80
    qA, qB, qRA, qRB = 16, 20, 24, 25
    dA, dB = {}, {}
    def qslot(ks):
        if ks < 3: return (131072, 147456, 114688)[ks]
        return (1 + (ks+2) % 3)*16384
    def qdmaA(ks):
        ops = [lambda: (A(f"s_add_u32 m0, s{sM}, {qslot(ks)}"), A(f"s_mov_b32 s65, {ks*64}"))]
        for j in range(4):
            ops.append(lambda j=j: dA.__setitem__(ks, A.vmem(f"buffer_load_dwordx4 v{qA+j}, s[{SX}:{SX+3}], s65 offen offset:{j*1024} lds")))
        return ops
    def qdmaB(st):
        ops = [lambda: (A(f"s_add_u32 m0, s{sM}, {65536+(st&3)*16384}"), A(f"s_add_u32 s66, s64, {st*64*8192}"))]
        for j in range(4):
            ops.append(lambda j=j: dB.__setitem__(st, A.vmem(f"buffer_load_dwordx4 v{qB+j}, s[{SWQ}:{SWQ+3}], s66 offen offset:{j*1024} lds")))
        return ops
    def setup(A_):
        nonlocal A
        A = A_
        D = Deferred(A)
        if MG: D("s_lshl_b32 s72, s7, 3")
        dma_a_voff(D, qA)
        dma_b_voff(D, qB)
        D(f"""
        s_and_b32 s4, s2, 7
        s_lshl_b32 s4, s4, 2
        s_bfe_u32 s5, s2, 0x20003
        s_add_u32 s4, s4, s5
        s_lshr_b32 s5, s2, 5
        s_sub_u32 s7, 15, s5
        s_lshl_b32 s7, s7, 3
        s_lshl_b32 s8, s5, 3
        s_sub_u32 s9, 7, s3
        s_add_u32 s10, s7, s3
        s_add_u32 s11, s7, s9
        s_add_u32 s12, s8, s3
        s_add_u32 s13, s8, s9
        s_lshl_b32 s{sM}, s3, 12
        s_lshr_b32 s64, s3, 1
        s_lshl_b32 s64, s64, 18
        s_and_b32 s14, s3, 1
        s_lshl_b32 s14, s14, 7
        s_add_u32 s64, s64, s14
        s_lshl_b32 s14, s4, 8
        s_add_u32 s64, s64, s14
        """)
        for j, src in ((3, 11), (2, 10), (1, 13), (0, 12)):
            D(f"s_lshl_b32 s14, s{src}, 14")
            if j: D(f"s_sub_u32 s14, s14, {j*1024}")
            D(f"v_add_u32 v{qA+j}, s14, v{qA}")
        if not MG: D("s_waitcnt lgkmcnt(0)")
        srd(D, SWQ, P_WQ, 4*MB)
        srd(D, SX, P_X, 2*MB)
        first = qdmaB(0) + qdmaA(0) + qdmaA(1) + qdmaB(1) + qdmaA(2)
        if not MG:
            for f in first: D.call(f)
        rd_a_addr(D, qRA, f"s{sM}")
        rd_b_addr(D, qRB, 65536)
        D(f"""
        v_add_u32 v29, 0x1c000, v{qRA}
        s_lshl_b32 s6, s4, 19
        s_add_u32 s{sK}, s6, s{sM}
        s_add_u32 s{sK}, s{sK}, {K_OFF}
        s_sub_u32 s7, 16, s5
        s_lshl_b32 s8, s7, 15
        s_add_u32 s{sKend}, s{sK}, s8
        s_lshl_b32 s{sTB}, s5, 1
        s_lshl_b32 s8, s5, 2
        s_sub_u32 s{sTA}, 27, s8
        s_lshl_b32 s14, s4, 12
        s_add_u32 s14, s14, {CTX_OFF}
        """)
        for k_, src in enumerate((10, 11, 12, 13)):
            D(f"s_lshl_b32 s15, s{src}, 17")
            D(f"s_add_u32 s{sC0+k_}, s15, s14")
        D(f"s_mov_b32 s{sTHR}, {hexf(THR)}")
        D(f"""
        v_and_b32 v32, 15, v0
        v_lshlrev_b32 v33, 2, v31
        v_sub_u32 v33, v32, v33
        s_lshl_b32 s7, s3, 4
        s_lshl_b32 s8, s9, 4
        v_add_u32 v{XB}, s7, v33
        v_add_u32 v{XB+1}, s8, v33
        v_cvt_f32_i32 v{XB}, v{XB}
        v_cvt_f32_i32 v{XB+1}, v{XB+1}
        v_mul_f32 v{XB}, {hexf(BIG)}, v{XB}
        v_mul_f32 v{XB+1}, {hexf(BIG)}, v{XB+1}
        v_mov_b32 v{vK}, v1
        """)
        if not MG: srd(D, SWS, P_WS, WS_USED)
        srd(D, SH, P_SSMK, 2*MB)
        if MG:
            srd(D, SD, P_DBG, 256)
            D(f"""
            s_lshl_b32 s74, s5, 10
            s_and_b32 s7, s2, 31
            s_lshl_b32 s7, s7, 2
            s_add_u32 s74, s74, s7
            s_add_u32 s74, s74, {F_OFF}
            s_lshl_b32 s67, s4, 3
            s_cmp_eq_u32 s3, 0
            s_cselect_b64 s[{sW0}:{sW0+1}], -1, 0
            s_lshl_b32 s7, s3, 28
            v_mov_b32 v{VW0}, s7
            """)
            D.call(lambda: flag_store(A, VW0, 9, 0, SWS, 74, 0))
            D.call(lambda: flag_store(A, VW0, 9, 0, SWS, 74, 1))
            gap = opts.get('mg_gap', 2)
            for f in first:
                D.call(f)
                for _ in range(gap): D.call(lambda: None)
        return D.q
    if MG:
        import k1
        A = k1.gen_k1(opts, setup)
    else:
        A = Asm()
        prologue(A, "K2_END")
        stamp(A, opts, 0)
        if LP: lstamp(A, opts, 0, 15)
        for f in setup(A): f()
    def dmaK():
        return [lambda j=j: A.vmem(f"buffer_load_dwordx4 v1, s[{SWS}:{SWS+3}], s{sK} offen offset:{j*1024} {hfl} lds") for j in range(4)]
    def dma_iter():
        ops = []
        ops.append(lambda: A(f"s_add_u32 m0, s{sM}, 65536"))
        ops.append(lambda: A(f"s_add_u32 s{sV}, s{sK}, {V_OFF-K_OFF}"))
        ops += [lambda j=j: A.vmem(f"buffer_load_dwordx4 v1, s[{SWS}:{SWS+3}], s{sV} offen offset:{j*1024} {hfl} lds") for j in range(4)]
        ops.append(lambda: A(f"s_add_u32 s{sK}, s{sK}, 16384"))
        ops.append(lambda: (A(f"s_cmp_ge_u32 s{sK}, s{sKend}"), A(f"s_cselect_b32 s{sK}, 0x40000000, s{sK}")))
        ops.append(lambda: A(f"s_add_u32 s{sM}, s{sM}, 16384"))
        ops.append(lambda: A(f"s_and_b32 s{sM}, s{sM}, 0xffff"))
        ops.append(lambda: A(f"s_mov_b32 m0, s{sM}"))
        ops.append(lambda: None)
        ops += dmaK()
        return ops
    def pf_wo():
        srd(A, 88, P_WO, 4*MB)
        mode = opts.get('k2_pfwo', 'end')
        if mode == 'start':
            A("""
            s_lshl_b32 s84, s2, 2
            s_add_u32 s84, s84, s3
            s_lshl_b32 s84, s84, 12
            v_lshlrev_b32 v13, 6, v0
            """)
            A.vmem("buffer_load_dword v14, v13, s[88:91], s84 offen")
        elif opts.get('k3_map', 'r512') == 'r256':
            A("""
            s_lshr_b32 s84, s2, 3
            s_lshl_b32 s84, s84, 2
            s_add_u32 s84, s84, s3
            s_lshl_b32 s84, s84, 15
            v_lshlrev_b32 v13, 7, v0
            """)
            for i_ in range(4):
                A.vmem("buffer_load_dword v14, v13, s[88:91], s84 offen")
                A("s_add_u32 s84, s84, 8192")
        else:
            A("""
            s_lshr_b32 s84, s2, 3
            s_lshl_b32 s84, s84, 2
            s_add_u32 s84, s84, s3
            s_lshl_b32 s84, s84, 15
            s_and_b32 s85, s2, 1
            s_lshl_b32 s85, s85, 9
            s_add_u32 s84, s84, s85
            v_lshrrev_b32 v13, 2, v0
            v_lshlrev_b32 v13, 10, v13
            v_and_b32 v14, 3, v0
            v_lshl_add_u32 v13, v14, 7, v13
            """)
            for i_ in range(2):
                A.vmem("buffer_load_dword v14, v13, s[88:91], s84 offen")
                A("s_add_u32 s84, s84, 16384")
    def conv_loads():
        A(f"""
        s_lshl_b32 s7, s2, 13
        s_lshl_b32 s8, s3, 10
        s_add_u32 s7, s7, s8
        s_add_u32 s8, s7, 4096
        s_lshl_b32 s10, s2, 2
        s_load_dword s75, s[{P_SSMD}:{P_SSMD+1}], s10
        v_subrev_u32 v{SC}, 16, v1
        s_lshl_b32 s10, s3, 6
        v_add_u32 v{SC+1}, s10, v0
        v_cmp_eq_u32 vcc, 0, v{SC+1}
        v_add_u32 v{SC+1}, s8, v{SC}
        v_add_u32 v{SC}, s7, v{SC}
        v_mov_b32 v{TMP}, 0x80000000
        v_cndmask_b32 v{SC}, v{SC}, v{TMP}, vcc
        v_cndmask_b32 v{SC+1}, v{SC+1}, v{TMP}, vcc
        """)
        A.vmem(f"buffer_load_dwordx4 {a(224,4)}, v{SC}, s[{SH}:{SH+3}], 0 offen")
        A.vmem(f"buffer_load_dwordx4 {a(228,4)}, v1, s[{SH}:{SH+3}], s7 offen")
        A.vmem(f"buffer_load_dwordx4 {a(232,4)}, v{SC+1}, s[{SH}:{SH+3}], 0 offen")
        A.vmem(f"buffer_load_dwordx4 {a(236,4)}, v1, s[{SH}:{SH+3}], s8 offen")
    def u_loads():
        A(f"""
        s_lshl_b32 s7, s2, 13
        s_lshl_b32 s10, s3, 10
        s_add_u32 s7, s7, s10
        s_add_u32 s7, s7, {U_OFF}
        s_add_u32 s8, s7, 4096
        s_add_u32 m0, s10, {UB+512}
        s_nop 0
        """)
        A.vmem(f"buffer_load_dwordx4 v1, s[{SWS}:{SWS+3}], s7 offen {hfl} lds")
        A(f"s_add_u32 m0, s10, {UB+4608+512}")
        A("s_nop 0")
        A.vmem(f"buffer_load_dwordx4 v1, s[{SWS}:{SWS+3}], s8 offen {hfl} lds")
    def qacc(j, ct): return 64 + (j*8+ct)*4
    def qa(ks, j): return 208 + (ks&1)*16 + j*4
    def qb(ks, ct): return (96 if ks & 1 else 160) + ct*4 if True else 0
    rA, rB = {}, {}
    rd = {}
    def readK(x, half): rd[('K', x)] = A.ds(f"ds_read_b128 {a(aK+x*4,4)}, v{vK} offset:{half*8192+x*1024}")
    def qreadsA(ks):
        r, o = (29, qslot(ks)-0x1c000) if ks < 3 else (qRA, qslot(ks))
        return [(lambda j=j: rA.__setitem__(ks, A.ds(f"ds_read_b128 {a(qa(ks,j),4)}, v{r} offset:{o+j*1024}"))) for j in range(4)]
    def qreadsB(ks):
        st, ksl = divmod(ks, 2)
        return [(lambda ct=ct, sec=sec: rB.__setitem__(ks, A.ds(f"ds_read_b64_tr_b16 {a(qb(ks,ct)+2*sec,2)}, v{qRB+(ct&3)} offset:{(st&3)*16384+ksl*8192+(ct>>2)*4096+sec*512}"))) for ct in range(8) for sec in range(2)]
    if MG and LP: lstamp(A, opts, 0, 15)
    A.wait(vm=dA[0])
    if not MG: A("s_waitcnt lgkmcnt(0)")
    A("s_barrier")
    if not MG: stamp(A, opts, 1)
    for f in qreadsA(0) + qreadsB(0): f()
    if MG:
        for f in A.tail: f()
        last_store = A.vm - 1
    def qcvt(j):
        n = (j + 2) % 4
        out = []
        for p in range(4):
            t = qacc(j, 2*p)
            for d in range(4): out.append(f"v_cvt_pk_bf16_f32 v{t+d}, v{t+2*d}, v{t+2*d+1}")
            for d in range(4): out.append(f"v_accvgpr_write_b32 a{aQ+n*16+p*4+d}, v{t+d}")
        return out
    bg = ["v_mov_b32 v32, 0x3f803f80"] + [f"v_accvgpr_write_b32 a{aONE+i_}, v32" for i_ in range(4)]
    bg += [f"v_mov_b32 v{Lreg(1,0)+i_}, 0" for i_ in range(16)] + [f"v_mov_b32 v{O0+i_}, 0" for i_ in range(64)]
    bg += [f"v_accvgpr_write_b32 a{aO+i_}, 0" for i_ in range(32)]
    bg += ["v_lshrrev_b32 v30, 1, v1", f"v_add_u32 v30, {UB}, v30"]
    late0 = [f"v_accvgpr_write_b32 a{aO+32+i_}, 0" for i_ in range(32)]
    cv = []
    pollA = f"buffer_load_dword v9, v{VW0}, s[{SD}:{SD+3}], s67 offen sc1"
    for ks in range(16):
        newst = (ks + 1) % 2 == 0 and ks + 1 < 16
        A.wait(vm=dB[(ks+1)//2] if newst else None, lg=max(rA[ks], rB[ks]))
        if LP: lstamp(A, opts, ks+1, 15)
        rq = qreadsB(ks+1) if ks + 1 < 16 else []
        ra = qreadsA(ks+1) if ks + 1 < 16 else []
        dq = qdmaA(ks+3) if ks + 3 < 16 else []
        if ks % 2 == 0 and ks//2 + 2 < 8: dq = dq + qdmaB(ks//2+2)
        if MG and ks == 3:
            assert A.vm_done > last_store
            dq = [lambda: (A("v_mov_b32 v8, 1"), one_lane(A, f"buffer_atomic_add v8, v{VW0}, s[{SD}:{SD+3}], s72 offen sc1"))] + dq
        if MG and ks == opts.get('mg_poll', 9): dq = [lambda: pid.append(A.vmem(pollA))] + dq; pid = []
        if MG and ks == 11: A.wait(vm=pid[0]); poll_check(A, slow, pollA, 9, 8, sT, sW0)
        if ks == 12:
            dq = dq + [lambda: A(f"s_mov_b32 m0, s{sM}")] + dmaK()
        if ks >= 13: dq = dq + dma_iter()
        if ks == 9:
            assert not bg
            ra = ra + [lambda: A.ds(f"ds_write_b64 v30, v[{O0}:{O0+1}]"), lambda: A.ds(f"ds_write_b64 v30, v[{O0}:{O0+1}] offset:4608")]
        if ks == 15: bg = late0
        nra = len(ra)
        for i in range(32):
            j, ct = divmod(i, 8)
            d = v(qacc(j, ct), 4)
            A(f"{MF} {d}, {a(qb(ks,ct),4)}, {a(qa(ks,j),4)}, {d if ks else 0}")
            if i == 0 and newst: A("s_barrier")
            n = 0
            if i == 19 and ra: A.wait(vm=dA[ks+1])
            if rq: rq.pop(0)(); n += 1
            elif ra and i >= 20: ra.pop(0)(); n += 1
            if dq and i % 2 == 1: dq.pop(0)(); n += 1
            if ks == 15 and i % 8 == 4 and i >= 8: cv += qcvt(i//8 - 1)
            while n < 2 and (cv or (bg and ks >= 1)):
                A((cv or bg).pop(0)); n += 1
        assert not rq and not ra and not dq, (ks, len(rq), len(ra), len(dq))
    A("s_waitcnt vmcnt(16)")
    A("s_barrier")
    for x in range(8): readK(x, 0)
    for o in bg + cv: A(o)
    for o in qcvt(3): A(o)
    if LP: lstamp(A, opts, 17, 15)

    def readV(x, half): rd[('V', x)] = A.ds(f"ds_read_b128 {a(aV+x*4,4)}, v{vV} offset:{half*8192+x*1024}")
    adv_ops = [f"v_add_u32 v{vV}, 0x10000, v{vK}", f"v_add_u32 v{vK}, 0x4000, v{vK}", f"v_and_b32 v{vK}, 0xffff, v{vK}"]
    def maskops(n, d):
        ops = [f"v_add_f32 v{CM+T*4+j}, {hexf((0.5-32*d-16*T-j)*BIG)}, v{XB+n%2}" for T in range(2) for j in range(4)]
        ops += [f"v_min_f32 v{CM+i_}, v{CM+i_}, v{Creg(n)}" for i_ in range(8)]
        return ops
    lab = [0]
    def cond_mask(n, d, val):
        lab[0] += 1
        A(f"s_cmp_eq_u32 s5, {val}")
        A(f"s_cbranch_scc1 K2_MK{lab[0]}")
        for i_ in range(8): A(f"v_mov_b32 v{CM+i_}, v{Creg(n)}")
        A(f"K2_NM{lab[0]}:")
        A("s_nop 1")
        B = Asm()
        B(f"K2_MK{lab[0]}:")
        for o in maskops(n, d): B(o)
        B(f"s_branch K2_NM{lab[0]}")
        slow.append(B)
    def slow_path(par, sm, nxt):
        lab[0] += 1
        n_ = lab[0]
        A(f"s_cbranch_vccnz K2_SLOW{n_}")
        A(f"K2_BACK{n_}:")
        B = Asm()
        B(f"K2_SLOW{n_}:")
        B("s_nop 7"); B("s_nop 3")
        m, t, f = SC, SC+1, SC+2
        for n in sm:
            r = [Sreg(par, T, n, j) for T in range(2) for j in range(4)]
            lo = Lreg(par^1, n)
            B(f"v_log_f32 v{t}, v{lo}")
            B(f"v_max3_f32 v{m}, v{r[0]}, v{r[1]}, v{r[2]}")
            B(f"v_max3_f32 v{m}, v{m}, v{r[3]}, v{r[4]}")
            B(f"v_max3_f32 v{m}, v{m}, v{r[5]}, v{r[6]}")
            B(f"v_max3_f32 v{m}, v{m}, v{r[7]}, 0")
            B(f"v_max_f32 v{m}, v{m}, v{t}")
            xlane(B, "v_max_f32", m, t)
            B(f"v_exp_f32 v{f}, -v{m}")
            for j in range(4): B(f"v_sub_f32 v{Creg(n)+j}, v{Creg(n)+j}, v{m}")
            for j in range(4): B(f"v_mul_f32 v{lo+j}, v{lo+j}, v{f}")
            for dt in range(8):
                for j in range(4):
                    o = Oidx(dt, n, j)
                    if Oacc(n):
                        B(f"v_accvgpr_read_b32 v{t}, a{o}"); B(f"v_mul_f32 v{t}, v{t}, v{f}"); B(f"v_accvgpr_write_b32 a{o}, v{t}")
                    else: B(f"v_mul_f32 v{o}, v{o}, v{f}")
            for T in range(2):
                for j in range(4):
                    B(f"v_sub_f32 v{Sreg(par,T,n,j)}, v{Sreg(par,T,n,j)}, v{m}")
                    B(f"v_sub_f32 v{Sreg(par^1,T,n,j)}, v{Sreg(par^1,T,n,j)}, v{m}")
            for i_, rr in enumerate(r): B(f"v_exp_f32 v{E0+i_}, v{rr}")
            B("s_nop 0")
            for d in range(4): B(f"v_cvt_pk_bf16_f32 v{Preg(par,n,d)}, v{E0+2*d}, v{E0+2*d+1}")
            B("s_nop 1")
            B(f"{MF} {v(Lreg(par,n),4)}, {a(aONE,4)}, {v(Preg(par,n),4)}, {v(lo,4)}")
        for e, (T, n, j) in enumerate(elems(nxt)[:LA]):
            B(f"v_exp_f32 v{E0+e}, v{Sreg(par^1,T,n,j)}")
        B("s_nop 7")
        B(f"s_branch K2_BACK{n_}")
        slow.append(B)

    def period(par, qk, sm, pv, nxt, kread, vread, advance, masked=None, mem=(), extra=(), bar=False, after_pre=None, sc_end=()):
        M = []
        units = []
        if qk:
            for x in range(8):
                T, ks = divmod(x, 4)
                for n in qk:
                    d = v(Sreg(par^1, T, n), 4)
                    c = d if ks else (v(CM+T*4, 4) if n == masked else v(Creg(n), 4))
                    M.append((f"{MF} {d}, {a(aK+x*4,4)}, {a(aQ+n*16+ks*4,4)}, {c}", len(units)))
                units.append(('K', x))
        nqk = len(M)
        if pv:
            for x in range(8):
                for n in pv:
                    M.append((f"{MF} {Oop(x,n)}, {a(aV+x*4,4)}, {v(Preg(par^1,n),4)}, {Oop(x,n)}", len(units)))
                units.append(('V', x))
        last_of = {}; first_of = {}
        for i_, (_, u) in enumerate(M): last_of[u] = i_; first_of.setdefault(u, i_)
        D = []
        if vread is not None:
            if qk: D += [(first_of[x], lambda x=x: readV(x, vread)) for x in range(8)]
            else:
                for x in range(8): readV(x, vread)
        if after_pre: after_pre()
        nv = len(D)
        if kread is not None:
            if qk and pv: D += [(first_of[8+x], lambda x=x: readK(x, kread)) for x in range(8)]
            else: D += [(last_of[x], lambda x=x: readK(x, kread)) for x in range(8)]
        advq = list(adv_ops) if advance else []
        if advance and nv == 0:
            for o in advq: A(o)
            advq = []
        el = elems(sm); ne = len(el)
        X = [('c', e) for e in range(LA, ne)] + [('n', e) for e in range(min(LA, len(elems(nxt))))]
        nx = elems(nxt)
        exp_at = {e: -9 for e in range(min(LA, ne))}
        cvt_next = 0
        cvt_at = {}
        sums = list(sm); sum_at = {}
        chk = []
        if sm:
            ls = [Lreg(par, n) for n in sm]
            if len(ls) == 1: chk = [f"v_cmp_lt_f32 vcc, s{sTHR}, v{ls[0]}"]
            else:
                if len(ls) == 2: chk = [f"v_max_f32 v{TMP}, v{ls[0]}, v{ls[1]}"]
                else: chk = [f"v_max3_f32 v{TMP}, v{ls[0]}, v{ls[1]}, v{ls[2]}"]
                if len(ls) == 4: chk.append(f"v_max_f32 v{TMP}, v{TMP}, v{ls[3]}")
                chk.append(f"v_cmp_lt_f32 vcc, s{sTHR}, v{TMP}")
        mem = list(mem); extra = list(extra); sc_end = list(sc_end)
        G = len(M) + len(sums)
        nX, nE, nmem = len(X), len(extra), len(mem)
        pos = lambda: len(A.L)
        mf_at = {}
        def valu_ready():
            nonlocal cvt_next
            if cvt_next < ne//2:
                e = 2*cvt_next + 1
                if e in exp_at and pos() - exp_at[e] >= 2:
                    T, n, j = el[e]
                    A(f"v_cvt_pk_bf16_f32 v{Preg(par,n,2*T+j//2)}, v{E0+(e-1)%8}, v{E0+e%8}")
                    cvt_at[cvt_next] = pos(); cvt_next += 1
                    return True
            if chk and not sums and pos() - max(sum_at.values()) >= 8:
                A(chk.pop(0)); return True
            if advq and len(D) <= (8 if kread is not None else 0):
                A(advq.pop(0)); return True
            return False
        def exp_ok():
            kind, e = X[0]
            ge = e if kind == 'c' else ne + e
            if ge >= 8 and (ge - 8)//2 >= cvt_next: return False
            if kind == 'n':
                T, n, j = nx[e]
                w = ((T*4+3)*len(qk) + qk.index(n))
                if w not in mf_at or pos() - mf_at[w] < 8: return False
            return True
        def do_exp():
            kind, e = X.pop(0)
            if kind == 'c':
                T, n, j = el[e]; A(f"v_exp_f32 v{E0+e%8}, v{Sreg(par,T,n,j)}"); exp_at[e] = pos() - 1
            else:
                T, n, j = nx[e]; A(f"v_exp_f32 v{E0+e%8}, v{Sreg(par^1,T,n,j)}")
        waited = set()
        def need_wait(i_next):
            for look in range(0, 3):
                i2 = i_next + look
                if i2 < len(M):
                    g4 = M[i2][1]//4
                    if g4 not in waited and all(units[y] in rd and not any(False for _ in ()) for y in range(g4*4, g4*4+4)):
                        pend = [units[y] for y in range(g4*4, g4*4+4)]
                        if pend[0][0] == 'V' and qk and vread is not None and (len(D) - (8 if kread is not None else 0)) > 7 - pend[3][1]: continue
                        return g4, look == 0
            return None, False
        def emit_wait(g4):
            waited.add(g4)
            n0 = pos(); A.wait(lg=max(rd[units[y]] for y in range(g4*4, g4*4+4))); return pos() > n0
        barq = ["s_waitcnt vmcnt(8)", "s_barrier"] if bar else []
        def scalar_slot(i_next, g):
            if barq: A(barq.pop(0)); return True
            g4, _ = need_wait(i_next)
            if g4 is not None and emit_wait(g4): return True
            if mem and mem[0][0] == 's' : mem.pop(0)[1](); return True
            if sc_end and not mem and g >= G - 8: sc_end.pop(0)(); return True
            return False
        i = 0; g = 0; prevDA = False
        xend = max(G - 1, 1)
        while i < len(M) or sums:
            n = sums[0] if sums else None
            took = False
            if n is not None:
                lastpair = (sm.index(n)+1)*4 - 1
                if lastpair in cvt_at and pos() - cvt_at[lastpair] >= 2:
                    A(f"{MF} {v(Lreg(par,n),4)}, {a(aONE,4)}, {v(Preg(par,n),4)}, {v(Lreg(par^1,n),4)}")
                    sum_at[n] = pos(); sums.pop(0); took = True
            if not took:
                if i < len(M):
                    g4, now = need_wait(i)
                    while M[i][1]//4 not in waited and not (g4 is not None and now):
                        while barq: A(barq.pop(0))
                        D.pop(0)[1]()
                        g4, now = need_wait(i)
                    if g4 is not None and now: emit_wait(g4)
                    assert M[i][1]//4 in waited, (i, M[i])
                    A(M[i][0]); mf_at[i] = pos(); i += 1
                else:
                    if X and X[0][0] == 'c' and exp_ok(): do_exp()
                    elif not valu_ready(): A("s_nop 0")
                    continue
            g += 1
            behind = (nX - len(X)) < nX * g / xend
            dready = D and D[0][0] < i and not barq and not (advq and len(D) <= 8 and kread is not None and nv)
            xready = X and exp_ok()
            vleft = len(D) - (8 if kread is not None else 0)
            urgent = nv and vleft > 0 and vleft*2 > nqk - i + 2
            if urgent and barq:
                while barq: A(barq.pop(0))
                dready = True
            if dready and (urgent or not prevDA or not (xready and behind)):
                D.pop(0)[1](); prevDA = True
                gdue = mem and mem[0][0] == 'g' and not barq and (nmem - len(mem)) <= nmem * g / max(G - 4, 1)
                if gdue: mem.pop(0)[1]()
                elif valu_ready(): pass
                elif extra: extra.pop(0)()
                else: scalar_slot(i, g)
            elif xready and behind:
                scalar_slot(i, g); do_exp(); prevDA = False
            else:
                prevDA = False
                if mem and mem[0][0] == 'g' and not barq and not D and not A.L[-2].strip().startswith('s_mov_b32 m0'):
                    mem.pop(0)[1](); k_ = 1
                else: scalar_slot(i, g); k_ = 2
                for _ in range(k_):
                    if valu_ready(): pass
                    elif extra: extra.pop(0)()
            while X and exp_ok() and (nX - len(X)) < nX * g / xend - 1:
                do_exp(); valu_ready()
            while extra and (nE - len(extra)) < nE * g / G - 2: extra.pop(0)()
        while barq: A(barq.pop(0))
        while X or chk or advq or D or mem or extra or sc_end or cvt_next < ne//2:
            if D and not advq: D.pop(0)[1]()
            elif mem:
                if mem[0][0] == 'g' and 'm0,' in A.L[-1]: A("s_nop 0")
                mem.pop(0)[1]()
            elif valu_ready(): pass
            elif X and exp_ok(): do_exp()
            elif extra: extra.pop(0)()
            elif sc_end: sc_end.pop(0)()
            else: A("s_nop 0")
        if sm: slow_path(par, sm, nxt)

    def mem_iter():
        d = dma_iter()
        kinds = "ssggggsSsss-gggg"
        out = []
        for k_, f in zip(kinds, d):
            if k_ == '-': continue
            if k_ == 'S':
                out.append(('s', lambda: A(f"s_cmp_ge_u32 s{sK}, s{sKend}")))
                out.append(('s', lambda: A(f"s_cselect_b32 s{sK}, 0x40000000, s{sK}")))
            else: out.append((k_, f))
        return out
    def epilogue_ops(n, par):
        ops = [f"v_rcp_f32 v{SC+4}, v{Lreg(par,n)}", "s_nop 0"]
        out = [(lambda o=o: A(o)) for o in ops]
        for ks in range(4):
            t = ET + (ks % 2)*8 if Oacc(n) else None
            src = []
            for hi in range(2):
                for j in range(4):
                    o = Oidx(2*ks+hi, n, j)
                    if Oacc(n):
                        r = t + hi*4 + j
                        out.append(lambda r=r, o=o: A(f"v_accvgpr_read_b32 v{r}, a{o}"))
                    else: r = o
                    src.append(r)
            for r in src: out.append(lambda r=r: A(f"v_mul_f32 v{r}, v{r}, v{SC+4}"))
            for d in range(4): out.append(lambda d=d, src=src: A(f"v_cvt_pk_bf16_f32 v{src[0]+d}, v{src[2*d]}, v{src[2*d+1]}"))
            out.append(lambda ks=ks, src=src: A.vmem(f"buffer_store_dwordx4 {v(src[0],4)}, v1, s[{SWS}:{SWS+3}], s{sC0+n} offen offset:{ks*1024} {stf}".rstrip()))
        return out
    nsec = [0]
    def sec(lv=4):
        if opts.get('lprof') != lv: return
        A("s_memtime s[98:99]")
        A("s_waitcnt lgkmcnt(0)")
        A(f"v_writelane_b32 v15, s98, {nsec[0]}"); nsec[0] += 1
    loops = []
    def loop(name, ns, cnt_reg):
        A(".p2align 6")
        A(f"{name}:")
        l0 = len(A.L)
        A.lg_done = A.lg - 8
        m = mem_iter()
        period(1, ns, ns, ns, ns, 1, 0, False, mem=m[:9], bar=True)
        period(0, ns, ns, ns, ns, 0, 1, True, mem=m[9:], sc_end=[lambda: A(f"s_sub_u32 s{cnt_reg}, s{cnt_reg}, 1"), lambda: A(f"s_cmp_lg_u32 s{cnt_reg}, 0")])
        A(f"s_cbranch_scc1 {name}")
        loops.append(A.L[l0:])
        A.lg_done = A.lg - 8
    def emit(ops):
        for o in ops: A(o)
        A("s_nop 1")
    def masked_iter(ns, n):
        m = mem_iter()
        emit(maskops(n, 0)); period(1, ns, ns, ns, ns, 1, 0, False, masked=n, mem=m[:9], bar=True)
        emit(maskops(n, 1)); period(0, ns, ns, ns, ns, 0, 1, True, masked=n, mem=m[9:])
    def last_iter(full, n0, n1, kmore):
        m = mem_iter()
        allt, red = full + (n0, n1), full + (n1,)
        emit(maskops(n1, 2)); period(1, red, allt, allt, red, 1, 0, False, masked=n1, mem=m[:9], bar=True)
        emit(maskops(n1, 3)); period(0, red, red, allt, red, 0 if kmore else None, 1, True, masked=n1, mem=m[9:])
    ALL, AB, BB = (0, 1, 2, 3), (0, 1), (2, 3)
    cyc(A, opts, 0)
    sec(); sec(5)
    stamp(A, opts, 2)
    for i_ in range(16): A(f"v_mov_b32 v{C0+i_}, 0")
    cond_mask(2, 0, 0)
    sec(5)
    D = Deferred(A); A_ = A
    cl = []
    class Rec:
        def __call__(self, t):
            for l in t.strip().split('\n'):
                if l.strip(): cl.append(lambda l=l: A_(l))
        def vmem(self, t): cl.append(lambda: A_.vmem(t))
    A = Rec(); conv_loads(); A = A_
    period(1, ALL, (), (), (), 1, None, False, masked=2, extra=cl)
    sec(5)
    A("s_nop 7")
    mx = ET
    for n in ALL:
        r = [Sreg(0, T, n, j) for T in range(2) for j in range(4)]
        A(f"v_max3_f32 v{mx+n}, v{r[0]}, v{r[1]}, v{r[2]}")
        A(f"v_max3_f32 v{mx+n}, v{mx+n}, v{r[3]}, v{r[4]}")
        A(f"v_max3_f32 v{mx+n}, v{mx+n}, v{r[5]}, v{r[6]}")
        A(f"v_max_f32 v{mx+n}, v{mx+n}, v{r[7]}")
    for sw in ("v_permlane16_swap_b32", "v_permlane32_swap_b32"):
        for n in ALL: A(f"v_mov_b32 v{mx+4+n}, v{mx+n}")
        for n in ALL: A(f"{sw} v{mx+n}, v{mx+4+n}")
        for n in ALL: A(f"v_max_f32 v{mx+n}, v{mx+n}, v{mx+4+n}")
    for n in ALL:
        for j in range(4): A(f"v_sub_f32 v{Creg(n)+j}, 0, v{mx+n}")
    cond_mask(2, 1, 0)
    for (T, n, j) in elems(ALL): A(f"v_sub_f32 v{Sreg(0,T,n,j)}, v{Sreg(0,T,n,j)}, v{mx+n}")
    for e in range(LA):
        T, n, j = elems(ALL)[e]; A(f"v_exp_f32 v{E0+e}, v{Sreg(0,T,n,j)}")
    sec(5)
    period(0, ALL, ALL, (), ALL, 0, None, True, masked=2)
    sec(5)
    sec()
    A("s_cmp_eq_u32 s5, 0")
    A("s_cbranch_scc1 K2_LASTD")
    A(f"s_sub_u32 s{sTB}, s{sTB}, 1")
    loop("K2_LOOPD", ALL, sTB)
    sec()
    masked_iter(ALL, 2)
    A("K2_LASTD:")
    sec()
    A.lg_done = A.lg - 8
    pollU = f"buffer_load_dword v14, v13, s[{SD}:{SD+3}], 0 offen sc1"
    if MG:
        A("v_and_b32 v13, 31, v0")
        A(f"v_lshl_add_u32 v13, v13, 3, v{VW0}")
        A(pollU)
    last_iter(AB, 2, 3, True)
    sec()
    if MG:
        A("s_waitcnt vmcnt(8)")
        poll_check(A, slow, pollU, 14, 8, sT, sW0)
    m = mem_iter(); e0 = epilogue_ops(2, 1); h = len(e0)//3
    cond_mask(0, 0, 7)
    period(1, AB, (0, 1, 3), (0, 1, 3), AB, 1, 0, False, masked=0, mem=m, bar=True)
    cond_mask(0, 1, 7)
    period(0, AB, AB, (0, 1, 3), AB, 0, 1, True, masked=0, extra=e0)
    sec()
    u_loads()
    for f in epilogue_ops(3, 1): f()
    sec()
    A("s_cmp_eq_u32 s5, 7")
    A("s_cbranch_scc1 K2_LASTS")
    loop("K2_LOOPS", AB, sTA)
    sec()
    masked_iter(AB, 0)
    A("K2_LASTS:")
    sec()
    A.lg_done = A.lg - 8
    last_iter((), 0, 1, False)
    sec()
    A("s_waitcnt vmcnt(8)")
    A("s_barrier")
    e0 = epilogue_ops(0, 1); h = len(e0)//2
    period(1, (), (1,), (1,), (), None, 0, False, extra=e0[:h])
    period(0, (), (), (1,), (), None, 1, False, extra=e0[h:])
    sec()
    A("s_nop 7")
    for f in epilogue_ops(1, 1): f()
    sec()
    ctx_last = A.vm - 1
    A.vm_done = 0
    stamp(A, opts, 3)
    cyc(A, opts, 1)
    sec(5)
    A("s_waitcnt vmcnt(8)")
    A("s_barrier")
    sec(5)
    if opts.get('k2_pfwo', 'end') == 'end': pf_wo()
    Z = 16
    for i_ in range(16): A(f"v_accvgpr_read_b32 v{HR+i_}, a{224+i_}")
    A(f"s_lshl_b32 s7, s3, 10")
    A(f"v_add_u32 v2, s7, v1")
    for ch in range(2):
        W = HR + 8*ch
        zb = Z + 24*ch
        for i_ in range(7): A(f"v_alignbit_b32 v{zb+i_}, v{W+i_+1}, v{W+i_}, 16")
        for i_ in range(1, 7): A(f"v_alignbit_b32 v{zb+8+i_-1}, v{W+i_+1}, v{W+i_}, 16")
        for i_ in range(1, 7): A(f"v_mov_b32 v{zb+16+i_-1}, v{W+i_}")
        src = {0: zb, 2: zb+8, 4: zb+2, 6: zb+8+2, 1: zb+16, 3: W+2, 5: zb+16+2, 7: W+4}
        for ci in range(8):
            A.ds(f"ds_write_b128 v2, {v(src[ci],4)} offset:{ch*33280+ci*4160+16}")
    A(f"""
    v_and_b32 v3, 15, v0
    v_mul_u32_u24 v3, 4160, v3
    v_mov_b32 v64, 0
    v_mov_b32 v65, 0
    v_mov_b32 v66, 0
    v_mov_b32 v67, 0
    """)
    A.ds("ds_write_b128 v3, v[64:67]")
    sec(5)
    A(f"""
    s_lshr_b32 s7, s3, 1
    s_and_b32 s8, s3, 1
    v_and_b32 v4, 7, v0
    v_mul_u32_u24 v4, 4160, v4
    v_bfe_u32 v5, v0, 3, 1
    v_lshrrev_b32 v6, 4, v0
    v_add_u32 v5, v5, v6
    v_lshl_add_u32 v4, v5, 4, v4
    s_mul_i32 s9, s7, 33280
    s_lshl_b32 s10, s8, 8
    s_add_u32 s9, s9, s10
    v_add_u32 v4, s9, v4
    v_and_b32 v7, 15, v0
    v_lshlrev_b32 v5, 1, v7
    v_sub_u32 v5, v5, v6
    v_lshlrev_b32 v5, 4, v5
    s_mul_i32 s9, s7, 4608
    s_add_u32 s9, s9, {UB+512+16-192}
    s_sub_u32 s11, s9, s10
    v_add_u32 v5, s11, v5
    s_waitcnt lgkmcnt(0)
    """)
    if MG: A.wait(vm=ctx_last)
    A("s_barrier")
    if MG: flag_store(A, VW0, 8, 1, SWS, 74, 0)
    A("""
    """)
    sec(5)
    A.lg_done = A.lg
    aF, aG = 96, 160
    ACC = 128
    rdc = {}
    def creads(rho):
        b = rho & 1
        out = []
        for i_ in range(8):
            out.append(lambda i_=i_: rdc.__setitem__(('F', rho, i_), A.ds(f"ds_read_b128 {a(aF+32*b+4*i_,4)}, v4 offset:{i_*512+rho*64}")))
            out.append(lambda i_=i_: rdc.__setitem__(('G', rho, i_), A.ds(f"ds_read_b128 {a(aG+32*b+4*i_,4)}, v5 offset:{i_*512+(3-rho)*64}")))
        return out
    for f in creads(0): f()
    first = set()
    for rho in range(4):
        b = rho & 1
        nx = creads(rho+1) if rho < 3 else []
        pairs = sorted([(t, s_) for t in range(8) for s_ in range(8) if t+s_ < 8], key=lambda p: (max(p), p))
        for i_, (t, s_) in enumerate(pairs):
            A.wait(lg=max(rdc[('F', rho, t)], rdc[('G', rho, s_)]))
            nt = t + s_
            d = v(ACC+4*nt, 4)
            A(f"{MF} {d}, {a(aF+32*b+4*t,4)}, {a(aG+32*b+4*s_,4)}, {d if nt in first else 0}")
            first.add(nt)
            if nx and i_ % 2 == 1 and i_ >= 3: nx.pop(0)()
        assert not nx
    sec(5)
    A(f"""
    v_lshrrev_b32 v8, 1, v6
    v_lshl_add_u32 v8, v7, 1, v8
    v_lshlrev_b32 v8, 4, v8
    v_and_b32 v9, 1, v6
    v_xor_b32 v9, 1, v9
    v_lshl_add_u32 v8, v9, 3, v8
    s_mul_i32 s9, s7, 4608
    s_lshl_b32 s10, s8, 11
    s_add_u32 s9, s9, s10
    s_add_u32 s9, s9, {UB+512}
    v_add_u32 v8, s9, v8
    s_lshl_b32 s9, s3, 12
    s_add_u32 s9, s9, {RED}
    v_add_u32 v10, s9, v1
    s_xor_b32 s9, s9, 4096
    v_add_u32 v11, s9, v1
    """)
    assert RED % 8192 == 0
    for i_ in range(4): A.ds(f"ds_read_b64 {v(16+2*i_,2)}, v8 offset:{i_*512}")
    A("s_cmp_eq_u32 s8, 0")
    A("s_cbranch_scc0 K2_CV1")
    for i_ in range(4): A(f"ds_write_b128 v10, {v(ACC+16+4*i_,4)} offset:{i_*1024}")
    A("s_branch K2_CV2")
    A("K2_CV1:")
    for i_ in range(4): A(f"ds_write_b128 v10, {v(ACC+4*i_,4)} offset:{i_*1024}")
    A("s_nop 1")
    for i_ in range(16): A(f"v_mov_b32 v{ACC+i_}, v{ACC+16+i_}")
    A("K2_CV2:")
    A("s_waitcnt lgkmcnt(0)")
    A("s_barrier")
    for i_ in range(4): A(f"ds_read_b128 {v(32+4*i_,4)}, v11 offset:{i_*1024}")
    A(f"""
    s_lshl_b32 s9, s75, 16
    s_and_b32 s10, s75, 0xffff0000
    s_cmp_eq_u32 s7, 0
    s_cselect_b32 s9, s9, s10
    s_lshl_b32 s10, s2, 13
    s_lshl_b32 s11, s7, 12
    s_add_u32 s10, s10, s11
    s_lshl_b32 s11, s8, 11
    s_add_u32 s10, s10, s11
    s_add_u32 s10, s10, {Z_OFF}
    v_lshlrev_b32 v13, 5, v7
    v_lshl_add_u32 v13, v6, 3, v13
    """)
    for i_ in range(4):
        A(f"v_and_b32 v48, 0xffff0000, v{16+2*i_+1}")
        A(f"v_lshlrev_b32 v49, 16, v{16+2*i_+1}")
        A(f"v_and_b32 v50, 0xffff0000, v{16+2*i_}")
        A(f"v_lshlrev_b32 v51, 16, v{16+2*i_}")
        for j in range(4): A(f"v_fmac_f32 v{ACC+4*i_+j}, s9, v{48+j}")
    A("s_waitcnt lgkmcnt(0)")
    for i_ in range(4):
        for j in range(4): A(f"v_add_f32 v{ACC+4*i_+j}, v{ACC+4*i_+j}, v{32+4*i_+j}")
        A(f"v_cvt_pk_bf16_f32 v{52+2*i_}, v{ACC+4*i_}, v{ACC+4*i_+1}")
        A(f"v_cvt_pk_bf16_f32 v{52+2*i_+1}, v{ACC+4*i_+2}, v{ACC+4*i_+3}")
        A.vmem(f"buffer_store_dwordx2 {v(52+2*i_,2)}, v13, s[{SWS}:{SWS+3}], s10 offen offset:{i_*512} {stf}")
    A.slow = slow; A.loops = [l + l for l in loops]
    if MG:
        stamp(A, opts, 4)
        if LP: ldump(A, opts, 18, 15)
        if opts.get('lprof') in (4, 5): sec(); sec(5); ldump(A, opts, 40, 15)
        return A
    stamp(A, opts, 4)
    if LP: ldump(A, opts, 18, 15)
    if opts.get('lprof') in (4, 5): sec(); sec(5); ldump(A, opts, 40, 15)
    dump_stamps(A, opts, 1)
    A("K2_END:")
    A("s_endpgm")
    A.cold = [l for B in slow for l in B.L]
    return A, [l + l for l in loops]
if __name__ == "__main__":
    A, ex = gen_k2()
    print("hazards:", check(A.L, "k2") + sum(check(e, "k2x") for e in ex), "instrs", len(A.L))
```

```python
from common import *
def gen_k3(opts={}):
    MG = opts.get('merged')
    hfl = opts.get('k3_hfl', 'sc1') if MG else ''
    SD = 80
    if MG:
        import k2
        A = k2.gen_k2(opts)
        z_last = A.vm - 1
    else:
        A = Asm()
        prologue(A, "K3_END")
        stamp(A, opts, 0)
    if opts.get('lprof') == 3: lstamp(A, opts, 0, 29)
    SWS, SWO, SX, SO = 48, 52, 56, 60
    NB = opts.get('k3_depth', 4)
    RING = 8
    if opts.get('k3_map', 'r512') == 'r256':
        A("""
        s_and_b32 s4, s2, 7
        s_lshl_b32 s4, s4, 2
        s_bfe_u32 s5, s2, 0x20003
        s_add_u32 s4, s4, s5
        s_lshr_b32 s5, s2, 5
        """)
    else:
        A("""
        s_bfe_u32 s4, s2, 0x20001
        s_lshl_b32 s4, s4, 3
        s_bfe_u32 s5, s2, 0x30003
        s_add_u32 s4, s4, s5
        s_and_b32 s5, s2, 1
        s_lshl_b32 s5, s5, 2
        s_lshr_b32 s6, s2, 6
        s_add_u32 s5, s5, s6
        """)
    if MG:
        A(f"""
        s_lshr_b32 s12, s4, 1
        s_sub_u32 s13, 15, s12
        s_min_u32 s12, s12, s13
        s_lshl_b32 s66, s12, 10
        s_add_u32 s66, s66, {F_OFF}
        s_lshl_b32 s67, s5, 10
        s_add_u32 s67, s67, {F_OFF}
        s_lshl_b32 s12, s3, 28
        v_mov_b32 v38, s12
        v_and_b32 v36, 31, v0
        v_lshl_add_u32 v36, v36, 2, v38
        """)
        pb = A.vmem(f"buffer_load_dword v37, v36, s[48:51], s66 offen sc1")
    A("""
    v_lshrrev_b32 v30, 3, v0
    v_lshlrev_b32 v30, 10, v30
    v_and_b32 v31, 1, v0
    v_lshl_add_u32 v30, v31, 4, v30
    v_bfe_u32 v31, v0, 1, 2
    v_lshrrev_b32 v32, 4, v0
    v_xor_b32 v31, v31, v32
    v_lshl_add_u32 v2, v31, 5, v30
    v_add_u32 v3, 7168, v2
    v_add_u32 v4, 14336, v2
    v_add_u32 v5, 21504, v2
    """)
    A("""
    v_lshrrev_b32 v30, 2, v0
    v_lshlrev_b32 v30, 7, v30
    v_and_b32 v31, 3, v0
    v_lshl_add_u32 v30, v31, 3, v30
    s_lshl_b32 s6, s3, 15
    v_add_u32 v30, s6, v30
    v_bfe_u32 v31, v0, 3, 2
    """)
    for ct in range(4):
        A(f"v_xor_b32 v33, {ct}, v31")
        A(f"v_lshl_add_u32 v{6+ct}, v33, 5, v30")
    for rt in range(4): A(f"v_add_u32 v{10+rt}, {rt*131072}, v1")
    A(f"""
    s_lshl_b32 s7, s4, 19
    s_add_u32 s7, s7, s6
    s_add_u32 s7, s7, {CTX_OFF}
    s_lshl_b32 s8, s3, 20
    s_lshl_b32 s9, s5, 7
    s_add_u32 s8, s8, s9
    s_waitcnt lgkmcnt(0)
    """)
    if not MG: srd(A, SWS, P_WS, WS_USED)
    srd(A, SWO, P_WO, 4*MB)
    pollB = f"buffer_load_dword v37, v36, s[{SWS}:{SWS+3}], s66 offen sc1"
    pollC = f"buffer_load_dword v37, v36, s[{SWS}:{SWS+3}], s67 offen offset:512 sc1"
    if MG:
        A.wait(vm=pb)
        poll_check(A, A.slow, pollB, 37, 1, 68, 18)
        A("s_barrier")
    last = {}
    def loads(k):
        sl = k % RING
        ops = []
        ops.append(lambda: (A(f"s_add_u32 m0, s6, {sl*4096}"), A(f"s_add_u32 s10, s8, {k*32768}")))
        for j in range(4):
            ops.append(lambda j=j: A.vmem(f"buffer_load_dwordx4 v{2+j}, s[{SWO}:{SWO+3}], s10 offen offset:{j*1024} lds"))
        if k % 4 == 0: ops.append(lambda: A(f"s_add_u32 s11, s7, {k*1024}"))
        for rt in range(4):
            def f(rt=rt): last[k] = A.vmem(f"buffer_load_dwordx4 {a(sl*16+rt*4,4)}, v{10+rt}, s[{SWS}:{SWS+3}], s11 offen offset:{(k%4)*1024} {hfl}")
            ops.append(f)
        return ops
    tsched = opts.get('k3_touch', {})
    def touch(wd):
        A(f"s_add_u32 s65, s64, {wd*8192}")
        A.vmem(f"buffer_load_dword v35, v34, s[{SWS}:{SWS+3}], s65 offen")
    if tsched:
        A(f"""
        s_bfe_u32 s64, s2, 0x20001
        s_lshl_b32 s64, s64, 5
        s_lshr_b32 s65, s2, 3
        s_add_u32 s64, s64, s65
        s_lshl_b32 s64, s64, 17
        s_add_u32 s64, s64, s6
        s_add_u32 s64, s64, {CTX_OFF}
        v_lshlrev_b32 v34, 7, v0
        """)
        for wd, kk in tsched.items():
            if kk == -2: touch(int(wd))
    for k in range(2):
        for f in loads(k): f()
    for wd, kk in tsched.items():
        if kk == -1: touch(int(wd))
    srd(A, SX, P_X, 2*MB)
    srd(A, SO, P_OUT, 2*MB)
    ZL = 131072
    A(f"""
    v_lshrrev_b32 v30, 1, v0
    v_lshlrev_b32 v30, 12, v30
    v_and_b32 v31, 1, v0
    v_lshl_add_u32 v14, v31, 4, v30
    v_add_u32 v15, {32*4096-1024}, v14
    s_lshl_b32 s12, s5, 18
    s_lshl_b32 s13, s4, 7
    s_add_u32 s12, s12, s13
    s_lshl_b32 s13, s3, 5
    s_add_u32 s12, s12, s13
    s_add_u32 s12, s12, {Z_OFF}
    s_lshl_b32 s13, s3, 11
    s_add_u32 s13, s13, {ZL}
    v_and_b32 v30, 15, v0
    s_lshl_b32 s14, s4, 6
    s_lshl_b32 s15, s3, 4
    s_add_u32 s14, s14, s15
    v_add_u32 v30, s14, v30
    v_lshlrev_b32 v16, 10, v30
    v_lshl_add_u32 v16, v32, 3, v16
    v_add_u32 v16, s9, v16
    v_lshrrev_b32 v17, 3, v30
    v_lshlrev_b32 v17, 7, v17
    v_and_b32 v31, 7, v30
    v_lshl_add_u32 v17, v31, 2, v17
    v_add_u32 v17, {G_OFF}, v17
    v_lshrrev_b32 v30, 2, v0
    v_lshlrev_b32 v30, 5, v30
    v_and_b32 v31, 3, v0
    v_lshl_add_u32 v30, v31, 3, v30
    v_add_u32 v18, s13, v30
    """)
    zid = []
    def zloads():
        A("s_mov_b32 m0, s13")
        A("s_nop 0")
        A.vmem(f"buffer_load_dwordx4 v14, s[{SWS}:{SWS+3}], s12 offen {hfl} lds")
        zid.append(A.vmem(f"buffer_load_dwordx4 v15, s[{SWS}:{SWS+3}], s12 offen offset:1024 {hfl} lds"))
    if not MG: zloads()
    for ct in range(4):
        A.vmem(f"buffer_load_dwordx2 {v(20+2*ct,2)}, v16, s[{SX}:{SX+3}], 0 offen offset:{ct*32}")
    A.vmem(f"buffer_load_dword v19, v17, s[{SWS}:{SWS+3}], 0 offen {hfl}")
    for k in range(2, NB):
        for f in loads(k): f()
    BF, ACC = 64, 128
    rdB = {}
    def breads(k):
        sl = k % RING
        return [(lambda ct=ct, sec=sec: rdB.__setitem__(k, A.ds(f"ds_read_b64_tr_b16 {v(BF+(k&1)*16+ct*4+2*sec,2)}, v{6+ct} offset:{sl*4096+sec*2048}"))) for ct in range(4) for sec in range(2)]
    A.wait(vm=last[0])
    if MG:
        assert A.vm_done > z_last
        A("s_barrier")
        flag_store(A, 38, 39, 1, SWS, 74, 1)
    else:
        stamp(A, opts, 1)
        cyc(A, opts, 0)
    for f in breads(0): f()
    NK = 32
    for k in range(NK):
        bq = []
        if k == 16 and not MG: stamp(A, opts, 2)
        if k + 1 < NK:
            A.wait(vm=last[k+1], lg=rdB[k])
            bq = breads(k+1)
        else: A.wait(lg=rdB[k])
        if opts.get('lprof') == 3: lstamp(A, opts, k+1, 29)
        lq = loads(k+NB) if k + NB < NK else []
        for wd, kk in tsched.items():
            if kk == k: lq = lq + [lambda wd=wd: touch(int(wd))]
        if MG and k == 20: lq = lq + [lambda: pc.append(A.vmem(pollC))]; pc = []
        if MG and k == 26: lq = lq + [lambda: (A.wait(vm=pc[0]), poll_check(A, A.slow, pollC, 37, 1, 68, 18), A('s_barrier'), zloads())]
        sl = k % RING
        for i in range(16):
            rt, ct = divmod(i, 4)
            d = v(ACC+(rt*4+ct)*4, 4)
            A(f"{MF} {d}, {v(BF+(k&1)*16+ct*4,4)}, {a(sl*16+rt*4,4)}, {d if k else 0}")
            if i % 2 == 0 and bq: bq.pop(0)()
            if lq and (i % 2 == 1 or len(lq) > (16-i)//2): lq.pop(0)()
        assert not bq and not lq
    if not MG:
        stamp(A, opts, 3)
        cyc(A, opts, 1)
    A.wait(vm=zid[0])
    for ct in range(4): A.ds(f"ds_read_b64_tr_b16 {v(40+2*ct,2)}, v18 offset:{ct*512}")
    A("s_barrier")
    A("s_lshl_b32 s10, s3, 12")
    A("v_add_u32 v30, s10, v1")
    A("s_lshl_b32 s10, s3, 14")
    A("v_add_u32 v31, s10, v1")
    A("s_nop 3")
    for rt in range(4):
        for ct in range(4):
            A.ds(f"ds_write_b128 v30, {v(ACC+(rt*4+ct)*4,4)} offset:{rt*16384+ct*1024}")
    A("s_waitcnt lgkmcnt(0)")
    A("s_barrier")
    ids = []
    for ct in range(4):
        for src in range(4):
            ids.append(A.ds(f"ds_read_b128 {v(ACC+(ct*4+src)*4,4)}, v31 offset:{src*4096+ct*1024}"))
    A("v_sub_f32 v28, 1.0, v19")
    for ct in range(4):
        for j in range(4):
            xr, zr = 20+2*ct+j//2, 40+2*ct+j//2
            if j % 2 == 0:
                A(f"v_lshlrev_b32 v48, 16, v{xr}"); A(f"v_lshlrev_b32 v49, 16, v{zr}")
            else:
                A(f"v_and_b32 v48, 0xffff0000, v{xr}"); A(f"v_and_b32 v49, 0xffff0000, v{zr}")
            A(f"v_mul_f32 v48, v48, v49")
            A(f"v_mul_f32 v{64+ct*4+j}, v48, v19")
    for ct in range(4):
        A.wait(lg=ids[ct*4+3])
        b = ACC + ct*16
        for j in range(4):
            A(f"v_add_f32 v{b+j}, v{b+j}, v{b+4+j}")
            A(f"v_add_f32 v{b+8+j}, v{b+8+j}, v{b+12+j}")
        for j in range(4):
            A(f"v_add_f32 v{b+j}, v{b+j}, v{b+8+j}")
        for j in range(4):
            A(f"v_fmac_f32 v{64+ct*4+j}, v{b+j}, v28")
        A(f"v_cvt_pk_bf16_f32 v{50+2*ct}, v{64+ct*4}, v{64+ct*4+1}")
        A(f"v_cvt_pk_bf16_f32 v{50+2*ct+1}, v{64+ct*4+2}, v{64+ct*4+3}")
        A(f"buffer_store_dwordx2 {v(50+2*ct,2)}, v16, s[{SO}:{SO+3}], 0 offen offset:{ct*32} {opts.get('k3_store','')}")
    if not MG: stamp(A, opts, 4)
    if opts.get('lprof') == 3: lstamp(A, opts, 33, 29); ldump(A, opts, 34, 29)
    dump_stamps(A, opts, 0 if MG else 2)
    A("K3_END:")
    A("s_endpgm")
    if MG:
        A.cold = [l for B in A.slow for l in B.L]
        return A, A.loops
    return A, []
if __name__ == "__main__":
    A, ex = gen_k3()
    print("hazards:", check(A.L, "k3"), "instrs", len(A.L))
```

```python
import sys, json
from common import *
import importlib
NAME = "gated_mix__ssm_conv_h3__compressed_kv_cla__prompt"
HDR = open("cdna_kernels/%s.s.ref" % NAME).read().split("; Override launch geometry")[0]
def build(opts, which=(1,2,3)):
    ks = []
    import common
    if opts.get('codepf', 1): common.CODEPF.update({'1': 'K3_END' if 3 in which else 'K1_END', '2': 'K2_END', '3': 'K3_END'})
    import common; common.SCRAMBLE.update(opts.get('scramble', ''))
    bad = 0
    if opts.get('merged'):
        import k3; A, extra = k3.gen_k3(opts)
        bad = check(A.L, "m") + check(A.cold, "cold") + sum(check(e, "mx") for e in extra)
        assert bad == 0
        s = HDR
        if opts.get('aslist'): s += f"; @launch kernel={NAME}_kernel grid=(256,1,1) block=(256,1,1) lds=163840\n"
        else: s += "; @launch grid=(256,1,1) block=(256,1,1) lds=163840\n"
        s += '.amdgcn_target "amdgcn-amd-amdhsa--gfx950"\n'
        s += kernel_wrap(NAME + "_kernel", A.text() + "\n".join(A.cold) + "\n", 512, 256)
        return s
    if 1 in which:
        import k1; A = k1.gen_k1(opts); bad += check(A.L, "k1"); ks.append(("gm_proj_kernel", A, 512, 256, 163840))
    if 2 in which:
        import k2; A, extra = k2.gen_k2(opts); bad += check(A.L, "k2") + check(A.cold, "k2cold") + sum(check(e, "k2x") for e in extra); ks.append(("gm_attn_kernel", A, 512, 256, 163840))
    if 3 in which:
        import k3; A, extra = k3.gen_k3(opts); bad += check(A.L, "k3") + sum(check(e, "k3x") for e in extra); ks.append(("gm_out_kernel", A, 512, 256, 163840))
    assert bad == 0, "hazards"
    s = HDR
    for n, A, nv, acc, lds in ks:
        s += f"; @launch kernel={n} grid=(256,1,1) block=(256,1,1) lds={lds}\n"
    s += '.amdgcn_target "amdgcn-amd-amdhsa--gfx950"\n'
    for n, A, nv, acc, lds in ks:
        s += kernel_wrap(n, A.text(), nv, acc)
    for n, A, nv, acc, lds in ks:
        if getattr(A, 'cold', None): s += ".text\n" + "\n".join(A.cold) + "\n"
    return s
if __name__ == "__main__":
    out = sys.argv[1]
    which = tuple(int(c) for c in sys.argv[2]) if len(sys.argv) > 2 else (1,2,3)
    opts = json.loads(sys.argv[3]) if len(sys.argv) > 3 else {}
    open(out, "w").write(build(opts, which))
    print("wrote", out)
```
